```python
import torch

def _softmax(x, axis=-1):
    return torch.softmax(x, dim=axis)
def _gelu(x):
    return torch.nn.functional.gelu(x, approximate="tanh")
def _silu(x):
    return torch.nn.functional.silu(x)
def _sigmoid(x):
    return torch.sigmoid(x)
def _layernorm(x, axis=-1, eps=1e-5):
    m = x.mean(dim=axis, keepdim=True)
    v = x.var(dim=axis, keepdim=True, unbiased=False)
    return (x - m) / torch.sqrt(v + eps)
def _scatter_add(tgt, idx, src, axis=0):
    return tgt.clone().index_add_(axis, idx, src)
def _segment_sum(src, seg, n):
    out = torch.zeros((n,) + src.shape[1:], dtype=src.dtype)
    return out.index_add_(0, seg, src)
def _pad(x, pw):
    flat = tuple(v for pair in reversed(pw) for v in pair)
    return torch.nn.functional.pad(x, flat)

kernel_name = 'interleave_layers__ssm_conv_h3__dense_activation_squared_relu__prompt'

def setup_inputs():

    _w = (lambda a: (lambda t: t.to(torch.bfloat16) if t.is_floating_point() else t)(torch.as_tensor(a)))
    def _A_setup():
        B, S, D = 1, 2048, 512
        ks = 4
        return {
            "q": _w((lambda *s: torch.randn(*s, dtype=torch.bfloat16) * 0.05)(B, S, D)),
            "k": _w((lambda *s: torch.randn(*s, dtype=torch.bfloat16) * 0.8)(B, S, D)),
            "v": _w((lambda *s: torch.randn(*s, dtype=torch.bfloat16) * 0.8)(B, S, D)),
            "shift_k": _w((lambda *s: torch.randn(*s, dtype=torch.bfloat16) * 0.8)(D, ks) * 0.5),
            "ssm_k": _w((lambda *s: torch.randn(*s, dtype=torch.bfloat16) * 0.8)(D, S) * (1.0 / S ** 0.5)),
            "ssm_D": _w((lambda *s: torch.randn(*s, dtype=torch.bfloat16) * 0.8)(D)),
        }
    _A_in = _A_setup()

    def _B_setup():
        B, S, D, F = 1, 2048, 512, 1792
        return {
            "x": _w((lambda *s: torch.randn(*s, dtype=torch.bfloat16) * 0.05)(B, S, D)),
            "w1": _w((lambda *s: torch.randn(*s, dtype=torch.bfloat16) * 0.05)(D, F)),
            "b1": _w((lambda *s: torch.randn(*s, dtype=torch.bfloat16) * 0.4)(F)),
            "w2": _w((lambda *s: torch.randn(*s, dtype=torch.bfloat16) * 0.05)(F, D)),
            "b2": _w((lambda *s: torch.randn(*s, dtype=torch.bfloat16) * 1.6)(D)),
        }
    _B_in = _B_setup()

    return {
        "A_q": _A_in["q"],
        "A_k": _A_in["k"],
        "A_v": _A_in["v"],
        "A_shift_k": _A_in["shift_k"],
        "A_ssm_k": _A_in["ssm_k"],
        "A_ssm_D": _A_in["ssm_D"],
        "B_x": _B_in["x"],
        "B_w1": _B_in["w1"],
        "B_b1": _B_in["b1"],
        "B_w2": _B_in["w2"],
        "B_b2": _B_in["b2"],
    }

def reference(A_q, A_k, A_v, A_shift_k, A_ssm_k, A_ssm_D, B_x, B_w1, B_b1, B_w2, B_b2):
    def _A_ref(q, k, v, shift_k, ssm_k, ssm_D):
        B, S, D = q.shape
        ks = shift_k.shape[-1]
        k_pad = _pad(k, ((0, 0), (ks - 1, 0), (0, 0)))
        k_shift = torch.zeros_like(k)
        for t in range(ks):
            k_shift = k_shift + k_pad[:, t:t + S, :] * shift_k[:, ks - 1 - t][None, None, :]
        kv = k_shift * v
        L = 2 * S
        kv_pad = _pad(kv, ((0, 0), (0, S), (0, 0)))
        kf_pad = _pad(ssm_k, ((0, 0), (0, S)))
        kv_f = (lambda x, axes=(-2,-1): torch.fft.rfft2(x.float(), dim=axes))(kv_pad[:, None, :, :], axes=(1, 2))
        kf_f = (lambda x, axes=(-2,-1): torch.fft.rfft2(x.float(), dim=axes))(kf_pad[:, None, :], axes=(1, 2))
        kf_f = (lambda x, *d: x.permute(*d))(kf_f, 1, 2, 0)
        y_f = kv_f * kf_f[None, :, :, :]
        y = (lambda x, s, axes=(-2,-1): torch.fft.irfft2(x, s=s, dim=axes).to(torch.bfloat16))(y_f, (1, L), axes=(1, 2))[:, 0, :S, :]
        y = y + kv * ssm_D[None, None, :]
        return q * y

    def _B_ref(x, w1, b1, w2, b2):
        h = torch.einsum("bsd,df->bsf", x, w1) + b1
        zero = torch.zeros_like(h)
        r = torch.where(h > zero, h, zero)
        h = r * r
        out = torch.einsum("bsf,fd->bsd", h, w2) + b2
        return out

    x = A_q
    x = x + _A_ref(_layernorm(x, axis=-1), A_k, A_v, A_shift_k, A_ssm_k, A_ssm_D)
    x = x + _B_ref(_layernorm(x, axis=-1), B_w1, B_b1, B_w2, B_b2)
    x = x + _A_ref(_layernorm(x, axis=-1), A_k, A_v, A_shift_k, A_ssm_k, A_ssm_D)
    x = x + _B_ref(_layernorm(x, axis=-1), B_w1, B_b1, B_w2, B_b2)
    return x
```

```python
class Asm:
    def __init__(self):
        self.lines = []
        self.vm = []
        self.lg = []
        self.smem = False
        self.nlabel = 0
        self.issued = set()
    def raw(self, s):
        self.lines.append(s)
    def __call__(self, s):
        self.lines.append("    " + s)
    def comment(self, s):
        self.lines.append("    ; " + s)
    def label(self, name):
        self.lines.append(name + ":")
    def newlabel(self, base="L"):
        self.nlabel += 1
        return f"{base}_{self.nlabel}"
    def vmem(self, s, tag=None):
        self(s); self.vm.append(tag); self.issued.add(tag); return tag
    def lds(self, s, tag=None):
        self(s); self.lg.append(tag); self.issued.add(tag); return tag
    def sload(self, s):
        self(s); self.smem = True
    def _need(self, q, tags):
        if not isinstance(tags, (list, tuple, set)): tags = [tags]
        for t in tags: assert t in self.issued, f'wait on never-issued tag {t}'
        idx = -1
        for i, t in enumerate(q):
            if t in tags: idx = i
        return idx
    def wait_vm(self, tags):
        idx = self._need(self.vm, tags)
        if idx < 0: return
        n = len(self.vm) - 1 - idx
        if n <= 62:
            self(f"s_waitcnt vmcnt({n})")
        self.vm = self.vm[idx+1:]
    def wait_lg(self, tags):
        idx = self._need(self.lg, tags)
        if idx < 0: return
        assert not self.smem
        n = len(self.lg) - 1 - idx
        if n <= 14:
            self(f"s_waitcnt lgkmcnt({n})")
        else:
            self(f"s_waitcnt lgkmcnt(15)")
        self.lg = self.lg[idx+1:]
    def wait_both(self, vtags, ltags):
        iv = self._need(self.vm, vtags); il = self._need(self.lg, ltags)
        parts = []
        if iv >= 0:
            n = len(self.vm) - 1 - iv
            if n <= 62: parts.append(f"vmcnt({n})")
            self.vm = self.vm[iv+1:]
        if il >= 0:
            n = len(self.lg) - 1 - il
            parts.append(f"lgkmcnt({min(n,15)})")
            self.lg = self.lg[il+1:]
        if parts: self("s_waitcnt " + " ".join(parts))
    def wait_vm0(self):
        self("s_waitcnt vmcnt(0)"); self.vm = []
    def wait_lg0(self):
        self("s_waitcnt lgkmcnt(0)"); self.lg = []; self.smem = False
    def wait_all(self):
        self("s_waitcnt vmcnt(0) lgkmcnt(0)"); self.vm = []; self.lg = []; self.smem = False
    def nop(self, n):
        while n > 0:
            k = min(n, 16)
            self(f"s_nop {k-1}")
            n -= k
    def srd(self, d, base, nbytes):
        self(f"s_mov_b32 s{d}, s{base}")
        self(f"s_and_b32 s{d+1}, s{base+1}, 0xffff")
        self(f"s_mov_b32 s{d+2}, {nbytes:#x}")
        self(f"s_mov_b32 s{d+3}, 0x20000")
    def text(self):
        return "\n".join(self.lines) + "\n"

def vr(a, n=1):
    return f"v{a}" if n == 1 else f"v[{a}:{a+n-1}]"
def ar(a, n=1):
    return f"a{a}" if n == 1 else f"a[{a}:{a+n-1}]"
def sr(a, n=1):
    return f"s{a}" if n == 1 else f"s[{a}:{a+n-1}]"

def kernel_header(name):
    return (f".globl {name}\n.p2align 8\n.type {name},@function\n{name}:\n")
def kernel_desc(name, vgpr, accum, sgpr=102):
    return (f".amdhsa_kernel {name}\n"
            f"  .amdhsa_next_free_vgpr {vgpr}\n"
            f"  .amdhsa_next_free_sgpr {sgpr}\n"
            f"  .amdhsa_accum_offset {accum}\n"
            f"  .amdhsa_group_segment_fixed_size 0\n"
            f"  .amdhsa_kernarg_size 112\n"
            f"  .amdhsa_user_sgpr_count 2\n"
            f"  .amdhsa_user_sgpr_kernarg_segment_ptr 1\n"
            f"  .amdhsa_system_sgpr_workgroup_id_x 1\n"
            f"  .amdhsa_float_denorm_mode_32 3\n"
            f".end_amdhsa_kernel\n")
```

```python
import sys
from asmlib import *

NAME = "interleave_layers__ssm_conv_h3__dense_activation_squared_relu__prompt"
KA_Q, KA_K, KA_V, KA_SK, KA_H, KA_D, KA_BX, KA_W1, KA_B1, KA_W2, KA_B2, KA_OUT, KA_DBG, KA_WS = [8*i for i in range(14)]
WS_UP, WS_QP, WS_YP, WS_X1P = 0x000000, 0x200000, 0x400000, 0x600000
WS_QST  = 0x800000
WS_C1P  = 0x810000
WS_C1   = 0x830000
WS_B1F  = 0x832000
WS_FLAG = 0x840000
WS_ST   = 0x850000
WS_W1P  = 0x900000
WS_W2P  = 0xB00000
WS_X3U  = 0xD00000
WS_H1   = 0x1000000
WS_H2   = 0x1800000
WS_SIZE = 0x2000000
MASKHI = "0xffff0000"
WS_STAMP = 0xF00000
import os
STAMPS = bool(os.environ.get("STAMPS"))

def unpack_lo(a, d, s): a(f"v_lshlrev_b32 v{d}, 16, v{s}")
def unpack_hi(a, d, s): a(f"v_and_b32 v{d}, {MASKHI}, v{s}")

def wave_sum(a, regs, tmps):
    n = len(regs)
    def pad():
        if n < 3: a.nop(3 - n)
    for sh in (8, 4, 2, 1):
        pad()
        for r in regs: a(f"v_add_f32_dpp v{r}, v{r}, v{r} row_ror:{sh} row_mask:0xf bank_mask:0xf")
    quad_sum(a, regs, tmps)

def quad_sum(a, regs, tmps):
    for op in ("v_permlane16_swap_b32", "v_permlane32_swap_b32"):
        for r, t in zip(regs, tmps): a(f"v_mov_b32 v{t}, v{r}")
        a.nop(2)
        for r, t in zip(regs, tmps): a(f"{op} v{r}, v{t}")
        a.nop(1)
        for r, t in zip(regs, tmps): a(f"v_add_f32 v{r}, v{r}, v{t}")

def round_bf16_pair(a, x, y, t):
    a(f"v_cvt_pk_bf16_f32 v{t}, v{x}, v{y}")
    unpack_lo(a, x, t); unpack_hi(a, y, t)

def gen_k0():
    a = Asm()
    a("s_cmp_ge_u32 s2, 256")
    a("s_cbranch_scc1 K0_END")
    a.sload(f"s_load_dwordx4 s[4:7], s[0:1], {KA_Q}")
    a.sload(f"s_load_dwordx4 s[8:11], s[0:1], {KA_V}")
    a.sload(f"s_load_dwordx2 s[12:13], s[0:1], {KA_W1}")
    a.sload(f"s_load_dwordx2 s[14:15], s[0:1], {KA_WS}")
    a("s_and_b32 s16, s2, 7")
    a("s_lshr_b32 s17, s2, 3")
    a("v_lshrrev_b32 v1, 5, v0")
    a("v_and_b32 v2, 31, v0")
    a("s_lshl_b32 s18, s17, 16")
    a("s_lshl_b32 s19, s16, 7")
    a("s_add_u32 s18, s18, s19")
    a("v_lshlrev_b32 v3, 13, v1")
    a("v_lshl_add_u32 v3, v2, 2, v3")
    a("v_add_u32 v3, s18, v3")
    a("v_add_u32 v4, 0x1000, v3")
    a("v_subrev_u32 v5, 0xc00, v3")
    a("s_lshl_b32 s19, s16, 9")
    a("v_lshlrev_b32 v6, 4, v2")
    a("v_add_u32 v6, s19, v6")
    a("v_lshrrev_b32 v7, 6, v0")
    a("v_and_b32 v8, 63, v0")
    a("s_lshl_b32 s19, s2, 13")
    a("v_lshlrev_b32 v9, 11, v7")
    a("v_lshl_add_u32 v9, v8, 4, v9")
    a("v_add_u32 v9, s19, v9")
    a("s_lshr_b32 s20, s2, 4")
    a("s_and_b32 s21, s2, 15")
    a("v_and_b32 v10, 15, v8")
    a("v_lshl_add_u32 v10, v7, 4, v10")
    a("v_lshrrev_b32 v11, 4, v8")
    a("v_and_b32 v12, 1, v11")
    a("v_lshlrev_b32 v12, 4, v12")
    a("v_lshrrev_b32 v13, 1, v11")
    a("v_lshl_add_u32 v12, v13, 2, v12")
    a("s_lshl_b32 s22, s21, 5")
    a("v_add_u32 v12, s22, v12")
    a("v_mul_u32_u24 v12, 3584, v12")
    a("s_mul_i32 s22, s20, 224")
    a("v_lshl_add_u32 v12, v10, 2, v12")
    a("v_add_u32 v12, s22, v12")
    a("v_cmp_gt_u32 vcc, 56, v10")
    a("v_mov_b32 v14, 0x7fffffff")
    a("s_nop 0")
    a("v_cndmask_b32 v12, v14, v12, vcc")
    a("v_lshrrev_b32 v13, 3, v10")
    a("v_lshlrev_b32 v13, 10, v13")
    a("v_lshl_add_u32 v13, v11, 8, v13")
    a("v_and_b32 v15, 7, v10")
    a("v_lshl_add_u32 v13, v15, 5, v13")
    a("s_mul_i32 s22, s20, 114688")
    a("s_mul_i32 s23, s21, 7168")
    a("s_add_u32 s22, s22, s23")
    a(f"s_add_u32 s22, s22, {WS_W1P:#x}")
    a("v_add_u32 v13, s22, v13")
    a("v_cndmask_b32 v13, v14, v13, vcc")
    a("s_mul_i32 s22, s20, 448")
    a("s_add_u32 s22, s22, s23")
    a(f"s_add_u32 s22, s22, {WS_C1P:#x}")
    a("v_lshlrev_b32 v15, 3, v10")
    a("v_add_u32 v15, s22, v15")
    a("v_cndmask_b32 v15, v14, v15, vcc")
    a("v_cmp_eq_u32 vcc, 0, v11")
    a("s_nop 1")
    a("v_cndmask_b32 v15, v14, v15, vcc")
    for e, r in enumerate((1, 2, 3, 8, 9, 10, 11)):
        a(f"s_mov_b32 s{24+e}, {r*3584}")
    a.wait_lg0()
    a.srd(32, 4, 0x200000)
    a.srd(36, 6, 0x200000)
    a.srd(40, 8, 0x200000)
    a.srd(44, 10, 4096)
    a.srd(48, 12, 512*3584)
    a.srd(52, 14, WS_SIZE)
    def rowoff(r):
        if r < 0: return ("v5", (r+3)*1024)
        if r < 4: return ("v3", r*1024)
        return ("v4", (r-4)*1024)
    a.vmem("buffer_load_dwordx4 v[44:47], v6, s[44:47], 0 offen", "sk")
    for r in range(-3, 8):
        vo, off = rowoff(r)
        a.vmem(f"buffer_load_dword v{19+r}, {vo}, s[36:39], 0 offen offset:{off}", f"k{r}")
        if r >= 0:
            a.vmem(f"buffer_load_dword v{28+r}, {vo}, s[40:43], 0 offen offset:{off}", f"v{r}")
    for r in range(8):
        vo, off = rowoff(r)
        a.vmem(f"buffer_load_dword v{36+r}, {vo}, s[32:35], 0 offen offset:{off}", f"q{r}")
    a.vmem("buffer_load_dwordx4 v[48:51], v9, s[32:35], 0 offen", "qs0")
    a.vmem("buffer_load_dwordx4 v[52:55], v9, s[32:35], 0 offen offset:1024", "qs1")
    so = ["0"] + [f"s{24+e}" for e in range(7)]
    for e in range(8):
        a.vmem(f"buffer_load_dword v{56+e}, v12, s[48:51], {so[e]} offen", f"w{e}")
    a("s_lshl_b32 s19, s2, 12")
    a("v_lshlrev_b32 v64, 4, v0")
    a("v_add_u32 v64, s19, v64")
    a("v_cmp_gt_u32 vcc, 0x4000, v64")
    a(f"v_add_u32 v64, {WS_FLAG:#x}, v64")
    a("v_mov_b32 v68, 0"); a("v_mov_b32 v69, 0"); a("v_mov_b32 v70, 0"); a("v_mov_b32 v71, 0")
    a("v_cndmask_b32 v64, v14, v64, vcc")
    a.vmem("buffer_store_dwordx4 v[68:71], v64, s[52:55], 0 offen", "fl")
    a("s_lshl_b32 s19, s16, 18")
    a("s_lshl_b32 s22, s17, 8")
    a("s_add_u32 s19, s19, s22")
    a("v_lshlrev_b32 v65, 13, v2")
    a("v_lshl_add_u32 v65, v1, 5, v65")
    a("v_add_u32 v65, s19, v65")
    a.wait_vm("sk")
    unpack_lo(a, 72, 44); unpack_hi(a, 73, 44); unpack_lo(a, 74, 45); unpack_hi(a, 75, 45)
    unpack_lo(a, 76, 46); unpack_hi(a, 77, 46); unpack_lo(a, 78, 47); unpack_hi(a, 79, 47)
    def kl(r): return 80 + r + 3
    def kh(r): return 92 + r + 3
    U = 104
    for r in range(-3, 8):
        a.wait_vm(f"k{r}")
        unpack_lo(a, kl(r), 19+r); unpack_hi(a, kh(r), 19+r)
        if r < 0: continue
        i = r
        A0, A1, P0, P1, T = 112, 113, 114, 115, 116
        a(f"v_mul_f32 v{A0}, v{kl(i-3)}, v75"); a(f"v_mul_f32 v{A1}, v{kh(i-3)}, v79")
        round_bf16_pair(a, A0, A1, T)
        for tap in (2, 1, 0):
            a(f"v_mul_f32 v{P0}, v{kl(i-tap)}, v{72+tap}"); a(f"v_mul_f32 v{P1}, v{kh(i-tap)}, v{76+tap}")
            round_bf16_pair(a, P0, P1, T)
            a(f"v_add_f32 v{A0}, v{A0}, v{P0}"); a(f"v_add_f32 v{A1}, v{A1}, v{P1}")
            round_bf16_pair(a, A0, A1, T)
        a.wait_vm(f"v{i}")
        unpack_lo(a, P0, 28+i); unpack_hi(a, P1, 28+i)
        a(f"v_mul_f32 v{A0}, v{A0}, v{P0}"); a(f"v_mul_f32 v{A1}, v{A1}, v{P1}")
        a(f"v_cvt_pk_bf16_f32 v{U+i}, v{A0}, v{A1}")
        if i == 3: a.vmem(f"buffer_store_dwordx4 v[{U}:{U+3}], v65, s[52:55], 0 offen", "su0")
        if i == 7: a.vmem(f"buffer_store_dwordx4 v[{U+4}:{U+7}], v65, s[52:55], 0 offen offset:16", "su1")
    a.wait_vm("q7")
    a(f"s_mov_b32 s19, {WS_QP:#x}")
    a.vmem("buffer_store_dwordx4 v[36:39], v65, s[52:55], s19 offen", "sq0")
    a.vmem("buffer_store_dwordx4 v[40:43], v65, s[52:55], s19 offen offset:16", "sq1")
    a.wait_vm("qs1")
    for r in range(2):
        for d in range(4):
            unpack_lo(a, 80+8*r+2*d, 48+4*r+d); unpack_hi(a, 81+8*r+2*d, 48+4*r+d)
    for r in range(2):
        b = 80+8*r
        a(f"v_add_f32 v{96+r}, v{b}, v{b+1}")
        for e in range(2, 8): a(f"v_add_f32 v{96+r}, v{96+r}, v{b+e}")
    wave_sum(a, [96, 97], [98, 99])
    for r in range(2): a(f"v_mul_f32 v{96+r}, 0x3b000000, v{96+r}")
    for r in range(2):
        b = 80+8*r
        for e in range(8): a(f"v_sub_f32 v{b+e}, v{b+e}, v{96+r}")
        a(f"v_mul_f32 v{100+r}, v{b}, v{b}")
        for e in range(1, 8): a(f"v_fmac_f32 v{100+r}, v{b+e}, v{b+e}")
    wave_sum(a, [100, 101], [98, 99])
    for r in range(2): a(f"v_mul_f32 v{100+r}, 0x3b000000, v{100+r}")
    round_bf16_pair(a, 96, 97, 98)
    round_bf16_pair(a, 100, 101, 98)
    for r in range(2): a(f"v_add_f32 v{100+r}, 0x3727c5ac, v{100+r}")
    round_bf16_pair(a, 100, 101, 98)
    for r in range(2): a(f"v_sqrt_f32 v{100+r}, v{100+r}")
    a.nop(1)
    round_bf16_pair(a, 100, 101, 98)
    for r in range(2): a(f"v_rcp_f32 v{100+r}, v{100+r}")
    a.nop(1)
    a("v_mov_b32 v80, v96"); a("v_mov_b32 v81, v100"); a("v_mov_b32 v82, v97"); a("v_mov_b32 v83, v101")
    a("s_lshl_b32 s19, s2, 6")
    a(f"s_add_u32 s19, s19, {WS_QST:#x}")
    a("v_lshlrev_b32 v84, 4, v7")
    a("v_cmp_eq_u32 vcc, 0, v8")
    a("v_add_u32 v84, s19, v84")
    a("s_nop 0")
    a("v_cndmask_b32 v84, v14, v84, vcc")
    a.vmem("buffer_store_dwordx4 v[80:83], v84, s[52:55], 0 offen", "sst")
    a("s_mov_b32 s22, 0x05040100"); a("s_mov_b32 s23, 0x07060302")
    a.wait_vm("w7")
    for d in range(4):
        a(f"v_perm_b32 v{16+d}, v{57+2*d}, v{56+2*d}, s22")
        a(f"v_perm_b32 v{20+d}, v{57+2*d}, v{56+2*d}, s23")
    a.vmem("buffer_store_dwordx4 v[16:19], v13, s[52:55], 0 offen", "sw0")
    a.vmem("buffer_store_dwordx4 v[20:23], v13, s[52:55], 0 offen offset:16", "sw1")
    for e in range(8):
        unpack_lo(a, 88+e, 56+e); unpack_hi(a, 96+e, 56+e)
    a("v_add_f32 v24, v88, v89"); a("v_add_f32 v25, v96, v97")
    for e in range(2, 8):
        a(f"v_add_f32 v24, v24, v{88+e}"); a(f"v_add_f32 v25, v25, v{96+e}")
    quad_sum(a, [24, 25], [26, 27])
    a.vmem("buffer_store_dwordx2 v[24:25], v15, s[52:55], 0 offen", "sc")
    a.label("K0_END")
    a("s_endpgm")
    return a.text(), 120

L_UR = [0x0000, 0x1200]
L_HE = [0x2400, 0x2400 + 8320]
L_HO = [0x2400 + 4160, 0x2400 + 12480]
L_XC = 0x6800
K1_LDS = L_XC + 32768


class Fill:
    def __init__(self): self.q = []
    def add(self, f): self.q.append(f)
    def ins(self, a, s): self.q.append(lambda: a(s))
    def emit(self, n=1):
        for _ in range(n):
            if self.q: self.q.pop(0)()
    def flush(self):
        while self.q: self.q.pop(0)()

def gen_k1():
    a = Asm()
    ACC = 24; AS = [56, 120]; BS = [88, 152]
    EU, EQ, ES, ED, W2R, W2O, UD = 184, 192, 200, 216, 220, 228, 236
    a("s_cmp_ge_u32 s2, 256")
    a("s_cbranch_scc1 K1_END")
    a.sload(f"s_load_dwordx4 s[4:7], s[0:1], {KA_H}")
    a.sload(f"s_load_dwordx4 s[8:11], s[0:1], {KA_B1}")
    a.sload(f"s_load_dwordx2 s[14:15], s[0:1], {KA_WS}")
    a("s_and_b32 s16, s2, 7")
    a("s_lshr_b32 s17, s2, 3")
    a("s_lshl_b32 s16, s16, 5")
    a("s_add_u32 s16, s16, s17")
    a("s_lshl_b32 s18, s16, 13")
    a("v_lshrrev_b32 v1, 6, v0")
    a("v_and_b32 v2, 63, v0")
    a("v_and_b32 v3, 15, v0")
    a("v_bfe_u32 v4, v0, 4, 2")
    a("v_lshlrev_b32 v5, 5, v0")
    a("v_lshlrev_b32 v6, 4, v0")
    a("v_mov_b32 v14, 0x7fffffff")
    a("v_subrev_u32 v7, 4, v6")
    a("v_cmp_eq_u32 vcc, 0, v0")
    a("v_readfirstlane_b32 s19, v1")
    a("s_nop 0")
    a("v_cndmask_b32 v7, v7, v14, vcc")
    a("v_lshlrev_b32 v8, 9, v1")
    a("v_lshl_add_u32 v8, v3, 4, v8")
    a("v_lshl_add_u32 v8, v4, 2, v8")
    a("v_lshlrev_b32 v9, 3, v8")
    a("v_lshlrev_b32 v8, 2, v8")
    a.wait_lg0()
    a.srd(32, 4, 0x200000)
    a.srd(52, 14, WS_SIZE)
    a("s_add_u32 s24, s18, 4096")
    U0, H0, H1, HP = 56, 64, 68, 72
    a.vmem(f"buffer_load_dwordx4 v[{U0}:{U0+3}], v5, s[52:55], s18 offen", "u0")
    a.vmem(f"buffer_load_dwordx4 v[{U0+4}:{U0+7}], v5, s[52:55], s18 offen offset:16", "u1")
    a.vmem(f"buffer_load_dwordx4 v[{H0}:{H0+3}], v6, s[32:35], s18 offen", "h0")
    a.vmem(f"buffer_load_dword v{HP}, v7, s[32:35], s18 offen", "h0p")
    a.vmem(f"buffer_load_dwordx4 v[{H1}:{H1+3}], v6, s[32:35], s24 offen", "h1")
    a.vmem(f"buffer_load_dword v{HP+1}, v7, s[32:35], s24 offen", "h1p")
    a.srd(36, 6, 1024)
    a.srd(40, 8, 3584)
    a.srd(44, 10, 1792*1024)
    a(f"s_add_u32 s25, s18, {WS_QP:#x}")
    a(f"s_mov_b32 s26, {WS_QST:#x}")
    a("s_lshl_b32 s27, s16, 2")
    a("v_mov_b32 v17, 0")
    for pp in range(2):
        a.vmem(f"buffer_load_dwordx4 v[{EU+4*pp}:{EU+3+4*pp}], v8, s[52:55], s18 offen offset:{1024*pp}", "e")
        a.vmem(f"buffer_load_dwordx4 v[{EQ+4*pp}:{EQ+3+4*pp}], v8, s[52:55], s25 offen offset:{1024*pp}", "e")
        a.vmem(f"buffer_load_dwordx4 v[{ES+8*pp}:{ES+3+8*pp}], v9, s[52:55], s26 offen offset:{2048*pp}", "e")
        a.vmem(f"buffer_load_dwordx4 v[{ES+4+8*pp}:{ES+7+8*pp}], v9, s[52:55], s26 offen offset:{2048*pp+16}", "e")
    a.vmem(f"buffer_load_dword v{ED}, v17, s[36:39], s27 offen", "e")
    a("s_lshr_b32 s20, s2, 4")
    a("s_and_b32 s21, s2, 15")
    a("v_lshl_add_u32 v10, v1, 2, v4")
    a("v_lshrrev_b32 v11, 1, v10")
    a("v_and_b32 v12, 1, v10")
    a("v_lshrrev_b32 v13, 1, v11")
    a("v_lshlrev_b32 v13, 5, v13")
    a("v_and_b32 v15, 1, v11")
    a("v_lshl_add_u32 v13, v15, 3, v13")
    a("v_cmp_eq_u32 vcc, 6, v11")
    a("v_lshlrev_b32 v15, 2, v12")
    a("v_lshlrev_b32 v16, 3, v12")
    a("v_cndmask_b32 v15, v15, v16, vcc")
    a("v_add_u32 v13, v13, v15")
    a("v_mov_b32 v15, 16")
    a("v_cndmask_b32 v15, v15, 4, vcc")
    a("s_mul_i32 s22, s20, 112")
    a("v_add_u32 v13, s22, v13")
    a("v_lshlrev_b32 v13, 10, v13")
    a("s_lshl_b32 s22, s21, 6")
    a("v_lshl_add_u32 v13, v3, 2, v13")
    a("v_add_u32 v13, s22, v13")
    a("v_lshl_add_u32 v15, v15, 10, v13")
    a("v_cmp_gt_u32 vcc, 14, v10")
    a("s_lshr_b32 s22, s21, 1")
    a("s_mul_i32 s22, s22, 229376")
    a("s_and_b32 s23, s21, 1")
    a("s_lshl_b32 s23, s23, 10")
    a("s_add_u32 s22, s22, s23")
    a("s_mul_i32 s23, s20, 14336")
    a("s_add_u32 s22, s22, s23")
    a(f"s_add_u32 s22, s22, {WS_W2P:#x}")
    a("v_lshlrev_b32 v16, 11, v11")
    a("v_lshl_add_u32 v16, v12, 9, v16")
    a("v_lshl_add_u32 v16, v3, 5, v16")
    a("v_add_u32 v16, s22, v16")
    a("v_cndmask_b32 v13, v14, v13, vcc")
    a("v_cndmask_b32 v15, v14, v15, vcc")
    a("v_cndmask_b32 v16, v14, v16, vcc")
    for e in range(8):
        a.vmem(f"buffer_load_dword v{W2R+e}, {'v13' if e<4 else 'v15'}, s[44:47], 0 offen offset:{1024*(e&3)}", "w2")
    Z = 76
    for d in range(4): a(f"v_mov_b32 v{Z+d}, 0")
    a("v_lshrrev_b32 v18, 5, v0")
    a(f"v_mul_u32_u24 v18, {L_UR[1]}, v18")
    a("v_and_b32 v19, 31, v0")
    a("v_lshl_add_u32 v18, v19, 4, v18")
    a("v_add_u32 v18, 4096, v18")
    a("v_subrev_u32 v19, 64, v0")
    a("v_lshrrev_b32 v20, 1, v19")
    a("v_mul_u32_u24 v20, 4160, v20")
    a("v_and_b32 v21, 1, v19")
    a("v_lshl_add_u32 v20, v21, 4, v20")
    a(f"v_add_u32 v20, {L_HE[0]}, v20")
    a("v_cmp_gt_u32 vcc, 64, v0")
    a("s_nop 1")
    a("v_cndmask_b32 v18, v20, v18, vcc")
    a("v_cmp_gt_u32 vcc, 72, v0")
    a("s_and_saveexec_b64 s[28:29], vcc")
    a.lds(f"ds_write_b128 v18, v[{Z}:{Z+3}]", "pad")
    a("s_mov_b64 exec, s[28:29]")
    a("s_and_b32 s24, s19, 1")
    a("s_lshr_b32 s25, s19, 1")
    a("v_and_b32 v10, 1, v3")
    a("v_cmp_eq_u32 vcc, 1, v10")
    a(f"v_mov_b32 v11, {L_HO[0]+32+20}")
    a(f"v_mov_b32 v12, {L_HE[0]+32+18}")
    a("v_cndmask_b32 v10, v11, v12, vcc")
    a("v_lshl_add_u32 v10, v3, 1, v10")
    a("v_lshlrev_b32 v11, 4, v4")
    a("v_sub_u32 v10, v10, v11")
    a("s_mul_i32 s26, s24, 8320")
    a("s_lshl_b32 s27, s25, 8")
    a("s_add_u32 s26, s26, s27")
    a("v_add_u32 v18, s26, v10")
    for k in range(1, 4): a(f"v_add_u32 v{18+k}, {1024*k}, v18")
    a(f"s_mul_i32 s26, s24, {L_UR[1]}")
    a("s_add_u32 s26, s26, s27")
    a("s_add_u32 s26, s26, 528")
    a("v_lshlrev_b32 v22, 5, v3")
    a("v_lshl_add_u32 v22, v4, 4, v22")
    a("v_sub_u32 v22, s26, v22")
    a("s_mov_b32 s22, 0x05040100"); a("s_mov_b32 s23, 0x07060302")
    a("v_sub_u32 v23, 4080, v6")
    a.wait_vm("u1")
    R0 = 80
    for d in range(4):
        a(f"v_perm_b32 v{R0+d}, v{U0+6-2*d}, v{U0+7-2*d}, s22")
        a(f"v_perm_b32 v{R0+4+d}, v{U0+6-2*d}, v{U0+7-2*d}, s23")
    a.lds(f"ds_write_b128 v23, v[{R0}:{R0+3}] offset:{L_UR[0]}", "ur")
    a.lds(f"ds_write_b128 v23, v[{R0+4}:{R0+7}] offset:{L_UR[1]}", "ur")
    for ch, (H, P) in enumerate(((H0, HP), (H1, HP+1))):
        a.wait_vm(f"h{ch}p")
        a.lds(f"ds_write_b128 v6, v[{H}:{H+3}] offset:{L_HE[ch]+32}", "he")
        O = 88 + 4*ch
        a(f"v_alignbit_b32 v{O}, v{H}, v{P}, 16")
        for d in range(1, 4): a(f"v_alignbit_b32 v{O+d}, v{H+d}, v{H+d-1}, 16")
        a.lds(f"ds_write_b128 v6, v[{O}:{O+3}] offset:{L_HO[ch]+32}", "ho")
    a.wait_lg0()
    a("s_barrier")
    F = Fill()
    T0, T1 = 252, 253
    F.add(lambda: a.wait_vm("e"))
    F.ins(a, f"v_lshlrev_b32 v{ED+1}, 16, v{ED}"); F.ins(a, f"v_and_b32 v{ED+2}, {MASKHI}, v{ED}")
    for e in range(8):
        m, r = ES + 2*e, ES + 2*e + 1
        F.ins(a, f"v_lshlrev_b32 v{T0}, 16, v{EU+e}"); F.ins(a, f"v_and_b32 v{T1}, {MASKHI}, v{EU+e}")
        F.ins(a, f"v_mul_f32 v{T0}, v{T0}, v{ED+1}"); F.ins(a, f"v_mul_f32 v{T1}, v{T1}, v{ED+2}")
        F.ins(a, f"v_cvt_pk_bf16_f32 v{T0}, v{T0}, v{T1}")
        F.ins(a, f"v_lshlrev_b32 v{UD+2*e}, 16, v{T0}"); F.ins(a, f"v_and_b32 v{UD+2*e+1}, {MASKHI}, v{T0}")
        F.ins(a, f"v_lshlrev_b32 v{T0}, 16, v{EQ+e}"); F.ins(a, f"v_and_b32 v{T1}, {MASKHI}, v{EQ+e}")
        F.ins(a, f"v_sub_f32 v{T0}, v{T0}, v{m}"); F.ins(a, f"v_sub_f32 v{T1}, v{T1}, v{m}")
        F.ins(a, f"v_cvt_pk_bf16_f32 v{T0}, v{T0}, v{T1}")
        F.ins(a, f"v_and_b32 v{T1}, {MASKHI}, v{T0}"); F.ins(a, f"v_lshlrev_b32 v{T0}, 16, v{T0}")
        F.ins(a, f"v_mul_f32 v{T0}, v{T0}, v{r}"); F.ins(a, f"v_mul_f32 v{T1}, v{T1}, v{r}")
        F.ins(a, f"v_cvt_pk_bf16_f32 v{T0}, v{T0}, v{T1}")
        F.ins(a, f"v_lshlrev_b32 v{m}, 16, v{T0}"); F.ins(a, f"v_and_b32 v{r}, {MASKHI}, v{T0}")
    F.add(lambda: a.wait_vm("w2"))
    for d in range(4):
        F.ins(a, f"v_perm_b32 v{W2O+d}, v{W2R+1+2*d}, v{W2R+2*d}, s22")
        F.ins(a, f"v_perm_b32 v{W2O+4+d}, v{W2R+1+2*d}, v{W2R+2*d}, s23")
    F.add(lambda: a.vmem(f"buffer_store_dwordx4 v[{W2O}:{W2O+3}], v16, s[52:55], 0 offen", "sw"))
    F.add(lambda: a.vmem(f"buffer_store_dwordx4 v[{W2O+4}:{W2O+7}], v16, s[52:55], 0 offen offset:16", "sw"))
    def load_frags(rp):
        st = rp & 1; out = []
        for n in range(8):
            A = AS[st] + 4*n; B = BS[st] + 4*n
            o = 128*(n & 1) + 16*rp
            out.append(lambda A=A, n=n, o=o: a.lds(f"ds_read2_b32 v[{A}:{A+1}], v{18+(n>>1)} offset0:{o} offset1:{o+1}", f"A{rp}_{n}"))
            out.append(lambda A=A, n=n, o=o: a.lds(f"ds_read2_b32 v[{A+2}:{A+3}], v{18+(n>>1)} offset0:{o+2} offset1:{o+3}", f"A{rp}_{n}b"))
            out.append(lambda B=B, n=n: a.lds(f"ds_read_b128 v[{B}:{B+3}], v22 offset:{512*(7-n)+64*rp}", f"B{rp}_{n}"))
        return out
    pend = load_frags(0)
    for f in pend[:12]: f()
    pend = pend[12:]
    first = [True]*8
    for rp in range(4):
        st = rp & 1
        if rp < 3: pend += load_frags(rp+1)
        pairs = sorted([(x, c) for x in range(8) for c in range(8) if x + c <= 7], key=lambda t: (max(t), t[0]+t[1]))
        for (x, c) in pairs:
            p = x + c
            need = [f"A{rp}_{x}b", f"B{rp}_{c}"]
            a.wait_lg(need)
            A = AS[st] + 4*x; B = BS[st] + 4*c; C = ACC + 4*p
            src = "0" if first[p] else f"v[{C}:{C+3}]"
            first[p] = False
            a(f"v_mfma_f32_16x16x32_bf16 v[{C}:{C+3}], v[{A}:{A+3}], v[{B}:{B+3}], {src}")
            if pend: pend.pop(0)()
            if rp >= 1: F.emit(2 if not pend else 1)
    F.flush()
    a("v_lshlrev_b32 v10, 4, v2")
    a("v_lshl_add_u32 v11, v1, 13, v10")
    a("v_lshl_add_u32 v12, v1, 11, v10")
    a.nop(8)
    for p in range(8):
        a.lds(f"ds_write_b128 v11, v[{ACC+4*p}:{ACC+4*p+3}] offset:{L_XC+1024*p}", "xw")
    a.wait_lg0()
    a("s_barrier")
    X = 56
    for pp in range(2):
        for src in range(4):
            r = X + 16*pp + 4*src
            a.lds(f"ds_read_b128 v[{r}:{r+3}], v12 offset:{L_XC+8192*src+1024*pp}", f"x{pp}")
    YO, XO = 96, 104
    a(f"s_add_u32 s25, s18, {WS_YP:#x}")
    a(f"s_add_u32 s26, s18, {WS_X1P:#x}")
    for pp in range(2):
        a.wait_lg(f"x{pp}")
        for i in range(4):
            e = 4*pp + i
            r = X + 16*pp + i
            a(f"v_add_f32 v{T0}, v{r}, v{r+8}"); a(f"v_add_f32 v{T1}, v{r+4}, v{r+12}")
            round_bf16_pair(a, T0, T1, 254)
            a(f"v_add_f32 v{T0}, v{T0}, v{UD+2*e}"); a(f"v_add_f32 v{T1}, v{T1}, v{UD+2*e+1}")
            a(f"v_cvt_pk_bf16_f32 v{YO+e}, v{T0}, v{T1}")
            unpack_lo(a, T0, YO+e); unpack_hi(a, T1, YO+e)
            a(f"v_mul_f32 v{T0}, v{T0}, v{ES+2*e}"); a(f"v_mul_f32 v{T1}, v{T1}, v{ES+2*e+1}")
            round_bf16_pair(a, T0, T1, 254)
            unpack_lo(a, 254, EQ+e); unpack_hi(a, 255, EQ+e)
            a(f"v_add_f32 v{T0}, v{T0}, v254"); a(f"v_add_f32 v{T1}, v{T1}, v255")
            a(f"v_cvt_pk_bf16_f32 v{XO+e}, v{T0}, v{T1}")
        a.vmem(f"buffer_store_dwordx4 v[{XO+4*pp}:{XO+4*pp+3}], v8, s[52:55], s26 offen offset:{1024*pp}", "so")
        a.vmem(f"buffer_store_dwordx4 v[{YO+4*pp}:{YO+4*pp+3}], v8, s[52:55], s25 offen offset:{1024*pp}", "so")
    a("s_cmp_ge_u32 s2, 7")
    a("s_cbranch_scc1 K1_END")
    a("s_lshl_b32 s20, s2, 8")
    a("v_add_u32 v10, s20, v0")
    a("v_lshlrev_b32 v11, 2, v10")
    a("v_lshlrev_b32 v12, 1, v10")
    for s in range(16):
        a(f"s_mov_b32 s21, {WS_C1P + 7168*s:#x}")
        a.vmem(f"buffer_load_dword v{120+s}, v11, s[52:55], s21 offen", "c")
    a.vmem("buffer_load_ushort v136, v12, s[40:43], 0 offen", "c")
    a.wait_vm0()
    for s in range(1, 16): a(f"v_add_f32 v120, v120, v{120+s}")
    a("v_lshlrev_b32 v136, 16, v136")
    a(f"s_mov_b32 s21, {WS_C1:#x}")
    a(f"s_mov_b32 s22, {WS_B1F:#x}")
    a.vmem("buffer_store_dword v120, v11, s[52:55], s21 offen", "c")
    a.vmem("buffer_store_dword v136, v11, s[52:55], s22 offen", "c")
    a.label("K1_END")
    a("s_endpgm")
    return a.text(), 256


FL_H = [0x0000, 0x1000]
FL_S = 0x2000
FL_X = 0x3000
L_RED = 114688
SC = "sc0 sc1"
SPIN_MAX = 200000
STAMP_NAMES = ["start","w1","g1a","ep1a","flHa","polHa","g2a","polS","flX","polX","g1b","ep1b","flHb","polHb","g2b","out","end"]

def stamp(a, idx):
    if not STAMPS: return
    a("s_memrealtime s[70:71]")
    a("s_waitcnt lgkmcnt(0)"); a.lg = []
    a(f"v_writelane_b32 v15, s70, {idx}")

def poll(a, voff, soff, name):
    L = a.newlabel("POLL"); E = a.newlabel("POLLX")
    a(f"s_mov_b32 s40, {SPIN_MAX}")
    a.label(L)
    a(f"buffer_load_dword v14, {voff}, s[52:55], {soff} offen sc1")
    a("s_sub_u32 s40, s40, 1")
    a("s_cbranch_scc1 " + E)
    a("s_waitcnt vmcnt(0)"); a.vm = []
    a("v_cmp_eq_u32 vcc, 0, v14")
    a("s_cbranch_vccnz " + L)
    a.label(E)
    a("s_waitcnt vmcnt(0)")

def ln_scalars(a, mean, var, tmp):
    for m, v in zip(mean, var):
        round_bf16_pair(a, m, v, tmp)
        a(f"v_add_f32 v{v}, 0x3727c5ac, v{v}")
        a(f"v_cvt_pk_bf16_f32 v{tmp}, v{v}, v{v}")
        unpack_lo(a, v, tmp)
        a(f"v_sqrt_f32 v{v}, v{v}")
        a.nop(1)
        a(f"v_cvt_pk_bf16_f32 v{tmp}, v{v}, v{v}")
        unpack_lo(a, v, tmp)
        a(f"v_rcp_f32 v{v}, v{v}")
        a.nop(1)

def gen_k2():
    a = Asm()
    AF = 128
    ACC1 = 72
    WS_ = 16; NW = 9
    SUM, SS, ONES = 52, 60, 68
    XM, YT, B2 = 224, 232, 240
    a("s_cmp_ge_u32 s2, 256")
    a("s_cbranch_scc1 K2_END")
    a.sload(f"s_load_dwordx4 s[4:7], s[0:1], {KA_B2}")
    a.sload(f"s_load_dwordx2 s[14:15], s[0:1], {KA_WS}")
    if STAMPS: a("v_mov_b32 v15, 0")
    a("s_and_b32 s16, s2, 7")
    a("s_lshr_b32 s17, s2, 3")
    a("s_lshl_b32 s16, s16, 1")
    a("s_lshr_b32 s21, s17, 4")
    a("s_add_u32 s16, s16, s21")
    a("s_and_b32 s17, s17, 15")
    a("s_lshr_b32 s19, s17, 3")
    a("s_and_b32 s20, s17, 7")
    a("v_lshrrev_b32 v1, 6, v0")
    a("v_and_b32 v2, 63, v0")
    a("v_readfirstlane_b32 s18, v1")
    a("v_lshlrev_b32 v3, 4, v2")
    a("v_and_b32 v4, 15, v2")
    a("v_lshrrev_b32 v5, 4, v2")
    a("v_add_u32 v6, 57344, v3")
    a("s_lshr_b32 s22, s18, 1")
    a("s_and_b32 s23, s18, 1")
    a.wait_lg0()
    stamp(a, 0)
    a.srd(52, 14, WS_SIZE)
    a.srd(56, 6, 0x200000)
    a.srd(60, 4, 1024)
    a("s_mul_i32 s24, s17, 114688")
    a(f"s_add_u32 s24, s24, {WS_W1P:#x}")
    a("s_lshl_b32 s25, s18, 12")
    a("s_add_u32 s24, s24, s25")
    for i in range(7):
        a(f"s_mov_b32 m0, s25")
        for c in range(4):
            if c == 0: a("s_nop 0")
            a.vmem(f"buffer_load_dwordx4 v3, s[52:55], s24 offen offset:{1024*c} lds", "w1")
        if i < 6:
            a("s_add_u32 s25, s25, 16384"); a("s_add_u32 s24, s24, 16384")
    a("v_and_b32 v7, 1, v5")
    a("v_lshlrev_b32 v7, 16, v7")
    a("v_lshrrev_b32 v8, 1, v5")
    a("v_lshl_add_u32 v7, v8, 14, v7")
    a("v_lshl_add_u32 v7, v4, 2, v7")
    a("s_lshl_b32 s24, s16, 9")
    a("s_lshl_b32 s25, s18, 7")
    a("s_add_u32 s24, s24, s25")
    a("v_add_u32 v7, s24, v7")
    a("v_add_u32 v8, 8192, v7"); a("v_add_u32 v9, 32768, v7"); a("v_add_u32 v10, 40960, v7")
    def a1_loads(s):
        out = []
        out.append(lambda: a(f"s_mov_b32 s26, {WS_X1P + 16*s*8192:#x}"))
        for rt in range(2):
            for e2 in range(4):
                out.append(lambda rt=rt, e2=e2: a.vmem(f"buffer_load_dword v{AF+8*s+4*rt+e2}, v{7+e2}, s[52:55], s26 offen offset:{64*rt}", f"A{s}_{rt}"))
        return out
    LOOK = 4
    for s in range(LOOK):
        for f in a1_loads(s): f()
    for d in range(4): a(f"v_mov_b32 v{ONES+d}, 0x3f803f80")
    a("v_and_b32 v11, 31, v2")
    a("v_lshrrev_b32 v12, 5, v2")
    a("s_lshl_b32 s27, s16, 7"); a("s_lshl_b32 s28, s19, 6"); a("s_add_u32 s27, s27, s28")
    a("s_lshl_b32 s28, s22, 5"); a("s_add_u32 s27, s27, s28")
    a("v_add_u32 v11, s27, v11")
    a("s_lshl_b32 s28, s20, 1"); a("s_add_u32 s28, s28, s23")
    a("v_lshlrev_b32 v13, 2, v11")
    a("v_lshl_add_u32 v13, v12, 14, v13")
    a("s_lshl_b32 s29, s28, 17")
    late = []
    for q in range(4):
        for d in range(2):
            off = (4*q + d) * 8192
            late.append(lambda off=off: a(f"s_add_u32 s30, s29, {WS_X1P + off:#x}"))
            late.append(lambda q=q, d=d: a.vmem(f"buffer_load_dword a{XM+2*q+d}, v13, s[52:55], s30 offen", "own"))
            late.append(lambda off=off: a(f"s_add_u32 s30, s29, {WS_YP + off:#x}"))
            late.append(lambda q=q, d=d: a.vmem(f"buffer_load_dword a{YT+2*q+d}, v13, s[52:55], s30 offen", "own"))
    late.append(lambda: a("v_lshlrev_b32 v13, 3, v12"))
    late.append(lambda: a("s_lshl_b32 s30, s28, 6"))
    for q in range(4):
        late.append(lambda q=q: a.vmem(f"buffer_load_dwordx2 a[{B2+2*q}:{B2+2*q+1}], v13, s[60:63], s30 offen offset:{16*q}", "own"))
    late.append(lambda: a("s_mul_i32 s30, s20, 229376"))
    late.append(lambda: a("s_mul_i32 s31, s18, 57344"))
    late.append(lambda: a("s_add_u32 s30, s30, s31"))
    late.append(lambda: a(f"s_add_u32 s30, s30, {WS_W2P:#x}"))
    late.append(lambda: a("s_lshl_b32 s31, s23, 10"))
    late.append(lambda: a("v_add_u32 v13, s31, v3"))
    late.append(lambda: a("v_xor_b32 v14, 1024, v13"))
    for ks in range(28):
        for c in range(2):
            late.append(lambda ks=ks, c=c: a.vmem(f"buffer_load_dwordx4 a[{(2*ks+c)*4}:{(2*ks+c)*4+3}], v{13+c}, s[52:55], s30 offen offset:{2048*(ks&1)}", "w2"))
        if ks & 1: late.append(lambda: a("s_add_u32 s30, s30, 4096"))

    def g1(layer, pre, late):
        CB = AF
        seq = [(s, ft) for s in range(16) for ft in range(7)]
        def wread(n):
            s, ft = seq[n]
            off = s*7168 + ft*1024
            base = "v3" if off < 57344 else "v6"
            if off >= 57344: off -= 57344
            r = WS_ + 4*(n % NW)
            a.lds(f"ds_read_b128 v[{r}:{r+3}], {base} offset:{off}", f"W{layer}_{n}")
        for n in range(NW - 1): wread(n)
        for s in range(16):
            F = Fill()
            for f in pre[s]: F.add(f)
            if s == 12:
                F.ins(a, "v_lshlrev_b32 v7, 4, v5")
                F.ins(a, "s_mul_i32 s26, s17, 448")
                F.ins(a, f"s_add_u32 s32, s26, {WS_C1:#x}")
                F.ins(a, f"s_add_u32 s33, s26, {WS_B1F:#x}")
                for ft in range(7):
                    F.add(lambda ft=ft: a.vmem(f"buffer_load_dwordx4 v[{CB+4*ft}:{CB+4*ft+3}], v7, s[52:55], s32 offen offset:{64*ft}", "cb"))
                    F.add(lambda ft=ft: a.vmem(f"buffer_load_dwordx4 v[{CB+28+4*ft}:{CB+28+4*ft+3}], v7, s[52:55], s33 offen offset:{64*ft}", "cb"))
            nfill = (len(F.q) + 17) // 18
            for ft in range(7):
                n = s*7 + ft
                r = WS_ + 4*(n % NW)
                for rt in range(2):
                    if ft == 0: a.wait_vm(f"A{s}_{rt}")
                    if rt == 0: a.wait_lg(f"W{layer}_{n}")
                    C = ACC1 + 8*ft + 4*rt; B = AF + 8*s + 4*rt
                    src = "0" if s == 0 else f"v[{C}:{C+3}]"
                    a(f"v_mfma_f32_16x16x32_bf16 v[{C}:{C+3}], v[{r}:{r+3}], v[{B}:{B+3}], {src}")
                    if rt == 0 and n + NW - 1 < len(seq): wread(n + NW - 1)
                    F.emit(nfill)
            for rt in range(2):
                B = AF + 8*s + 4*rt
                for (C, A) in ((SUM + 4*rt, ONES), (SS + 4*rt, B)):
                    src = "0" if s == 0 else f"v[{C}:{C+3}]"
                    a(f"v_mfma_f32_16x16x32_bf16 v[{C}:{C+3}], v[{A}:{A+3}], v[{B}:{B+3}], {src}")
                    F.emit(nfill)
            F.flush()
        stamp(a, 2 + 8*layer)
        T = WS_
        a("v_lshrrev_b32 v16, 2, v4")
        a("v_cmp_eq_u32 s[34:35], v16, v5")
        a("v_and_b32 v16, 3, v4")
        a("v_cmp_eq_u32 s[36:37], 1, v16")
        a("v_cmp_eq_u32 s[38:39], 2, v16")
        a("v_cmp_eq_u32 vcc, 3, v16")
        a.nop(4)
        for rt in range(2):
            S = SS + 4*rt; d = 18 + rt
            a(f"v_cndmask_b32 v{d}, v{S}, v{S+1}, s[36:37]")
            a(f"v_cndmask_b32 v{d}, v{d}, v{S+2}, s[38:39]")
            a(f"v_cndmask_b32 v{d}, v{d}, v{S+3}, vcc")
            a(f"v_cndmask_b32 v{d}, 0, v{d}, s[34:35]")
        quad_sum(a, [18, 19], [20, 21])
        for rt in range(2):
            a(f"v_mul_f32 v{22+rt}, 0x3b000000, v{SUM+4*rt}")
            a(f"v_mul_f32 v{18+rt}, 0x3b000000, v{18+rt}")
            a(f"v_fma_f32 v{18+rt}, -v{22+rt}, v{22+rt}, v{18+rt}")
            a(f"v_max_f32 v{18+rt}, 0, v{18+rt}")
        ln_scalars(a, [22, 23], [18, 19], 20)
        a("v_lshlrev_b32 v24, 9, v5")
        a("v_lshl_add_u32 v24, v4, 4, v24")
        a("v_lshrrev_b32 v25, 1, v5")
        a("v_lshlrev_b32 v25, 9, v25")
        a("v_lshl_add_u32 v25, v4, 4, v25")
        a("v_and_b32 v26, 1, v5")
        a("v_lshl_add_u32 v25, v26, 3, v25")
        a("s_lshl_b32 s26, s16, 2"); a("s_add_u32 s26, s26, s18")
        a("s_mul_i32 s26, s26, 114688")
        a("s_mul_i32 s32, s17, 7168")
        a("s_add_u32 s26, s26, s32")
        a(f"s_add_u32 s26, s26, {(WS_H1, WS_H2)[layer]:#x}")
        a("s_add_u32 s32, s26, 4096")
        a.wait_vm("cb")
        O = 28
        oi = 0
        for p in range(4):
            for rt in range(2):
                o = O + 4*(oi % 6); oi += 1
                for h in range(2 if p < 3 else 1):
                    ft = 2*p + h
                    C = ACC1 + 8*ft + 4*rt
                    for i in range(4):
                        a(f"v_fma_f32 v{C+i}, -v{22+rt}, v{CB+4*ft+i}, v{C+i}")
                    for i in range(4):
                        a(f"v_fma_f32 v{C+i}, v{C+i}, v{18+rt}, v{CB+28+4*ft+i}")
                    for i in range(4):
                        a(f"v_max_f32 v{C+i}, 0, v{C+i}")
                    for i in range(4):
                        a(f"v_mul_f32 v{C+i}, v{C+i}, v{C+i}")
                    a(f"v_cvt_pk_bf16_f32 v{o+2*h}, v{C}, v{C+1}")
                    a(f"v_cvt_pk_bf16_f32 v{o+2*h+1}, v{C+2}, v{C+3}")
                if p < 2:
                    a.vmem(f"buffer_store_dwordx4 v[{o}:{o+3}], v24, s[52:55], s26 offen offset:{2048*p+256*rt} {SC}", "hs")
                elif p == 2:
                    a.vmem(f"buffer_store_dwordx4 v[{o}:{o+3}], v24, s[52:55], s32 offen offset:{256*rt} {SC}", "hs")
                else:
                    a.vmem(f"buffer_store_dwordx2 v[{o}:{o+1}], v25, s[52:55], s32 offen offset:{2048+256*rt} {SC}", "hs")
        stamp(a, 3 + 8*layer)
        a("v_cmp_eq_u32 vcc, 0, v2")
        a("v_mov_b32 v16, 0x7fffffff")
        a("v_mov_b32 v17, 1")
        a("v_cndmask_b32 v16, v16, 0, vcc")
        a("s_lshl_b32 s26, s16, 1"); a("s_add_u32 s26, s26, s22"); a("s_lshl_b32 s26, s26, 4"); a("s_add_u32 s26, s26, s17")
        a("s_lshl_b32 s26, s26, 1"); a("s_add_u32 s26, s26, s23"); a("s_lshl_b32 s26, s26, 2")
        a(f"s_add_u32 s26, s26, {WS_FLAG + FL_H[layer]:#x}")
        a.wait_vm0()
        a.vmem(f"buffer_store_dword v17, v16, s[52:55], s26 offen {SC}", "fl")
        stamp(a, 4 + 8*layer)

    def g2(layer):
        ACC2 = 64
        slots = [128 + 4*i for i in range(32)] + [16 + 4*i for i in range(12)]
        NS = len(slots)
        a("v_and_b32 v13, 7, v2"); a("v_lshlrev_b32 v13, 2, v13")
        a("s_lshl_b32 s26, s16, 1"); a("s_add_u32 s26, s26, s19"); a("s_lshl_b32 s26, s26, 2"); a("s_add_u32 s26, s26, s18")
        a("s_lshl_b32 s26, s26, 5")
        a(f"s_add_u32 s26, s26, {WS_FLAG + FL_H[layer]:#x}")
        a("s_lshl_b32 s32, s16, 1"); a("s_add_u32 s32, s32, s19"); a("s_mul_i32 s32, s32, 229376")
        a("s_mul_i32 s33, s18, 28672"); a("s_add_u32 s32, s32, s33")
        a(f"s_add_u32 s32, s32, {(WS_H1, WS_H2)[layer]:#x}")
        a("s_mul_i32 s33, s22, 114688")
        a("v_add_u32 v7, s33, v3")
        a("s_sub_u32 s33, 114688, s33")
        a("v_add_u32 v8, s33, v3")
        poll(a, "v13", "s26", "H")
        stamp(a, 5 + 8*layer)
        loads = []
        for ks in range(28):
            for t in range(2):
                n = 2*ks + t; r = slots[n % NS]
                loads.append(lambda ks=ks, t=t, r=r, n=n: a.vmem(f"buffer_load_dwordx4 v[{r}:{r+3}], v{7+t}, s[52:55], s32 offen offset:{1024*(ks&3)} sc1", f"H{layer}_{n}"))
            if (ks & 3) == 3: loads.append(lambda: a("s_add_u32 s32, s32, 4096"))
        cnt = 0
        while cnt < NS:
            before = len(a.vm); loads.pop(0)()
            if len(a.vm) > before: cnt += 1
        for ks in range(28):
            for t in range(2):
                n = 2*ks + t; r = slots[n % NS]
                a.wait_vm(f"H{layer}_{n}")
                for c in range(2):
                    C = ACC2 + 16*(2*t + c); W = (2*ks + c)*4
                    src = "0" if ks == 0 else f"v[{C}:{C+15}]"
                    a(f"v_mfma_f32_32x32x16_bf16 v[{C}:{C+15}], a[{W}:{W+3}], v[{r}:{r+3}], {src}")
                while loads:
                    before = len(a.vm); loads.pop(0)()
                    if len(a.vm) > before: break
        stamp(a, 6 + 8*layer)
        for k in range(1, 4):
            a(f"s_xor_b32 s26, s18, {k}")
            a("s_mul_i32 s26, s26, 12288")
            a(f"s_add_u32 s26, s26, {L_RED + (k-1)*4096}")
            a(f"v_add_u32 v{16+k}, s26, v3")
        a("s_mul_i32 s26, s18, 12288")
        a(f"s_add_u32 s26, s26, {L_RED}")
        a("v_add_u32 v16, s26, v3")
        a.nop(8)
        for k in range(1, 4):
            for r4 in range(4):
                C = ACC2 + 16*k + 4*r4
                a.lds(f"ds_write_b128 v{16+k}, v[{C}:{C+3}] offset:{1024*r4}", "rw")
        XF, BF = 128, 144
        a.wait_vm("own")
        for d in range(8):
            a(f"v_accvgpr_read_b32 v20, a{XM+d}")
            a(f"v_accvgpr_read_b32 v21, a{B2+d}")
            unpack_lo(a, XF+2*d, 20); unpack_hi(a, XF+2*d+1, 20)
            unpack_lo(a, BF+2*d, 21); unpack_hi(a, BF+2*d+1, 21)
        a.wait_lg0()
        a("s_barrier")
        RD = 160
        for k in range(3):
            for r4 in range(4):
                r = RD + 16*k + 4*r4
                a.lds(f"ds_read_b128 v[{r}:{r+3}], v16 offset:{4096*k+1024*r4}", f"rr{k}")
        for k in range(3):
            a.wait_lg(f"rr{k}")
            for i in range(16): a(f"v_add_f32 v{ACC2+i}, v{ACC2+i}, v{RD+16*k+i}")
        P = 24
        for d in range(8):
            x, y = ACC2+2*d, ACC2+2*d+1
            round_bf16_pair(a, x, y, 20)
            a(f"v_add_f32 v{x}, v{x}, v{BF+2*d}"); a(f"v_add_f32 v{y}, v{y}, v{BF+2*d+1}")
            round_bf16_pair(a, x, y, 20)
            a(f"v_add_f32 v{x}, v{x}, v{XF+2*d}"); a(f"v_add_f32 v{y}, v{y}, v{XF+2*d+1}")
            a(f"v_cvt_pk_bf16_f32 v{P+d}, v{x}, v{y}")
        if layer == 1:
            a("v_lshlrev_b32 v13, 10, v11")
            a("v_lshl_add_u32 v13, v12, 3, v13")
            a("s_lshl_b32 s26, s28, 6")
            for q in range(4):
                a.vmem(f"buffer_store_dwordx2 v[{P+2*q}:{P+2*q+1}], v13, s[56:59], s26 offen offset:{16*q}", "out")
            stamp(a, 15)
            return
        X2 = ACC2
        for d in range(8):
            unpack_lo(a, X2+2*d, P+d); unpack_hi(a, X2+2*d+1, P+d)
        def half_sum(r, t):
            a(f"v_mov_b32 v{t}, v{r}"); a.nop(2)
            a(f"v_permlane32_swap_b32 v{r}, v{t}"); a.nop(1)
            a(f"v_add_f32 v{r}, v{r}, v{t}")
        a(f"v_add_f32 v32, v{X2}, v{X2+1}")
        for i in range(2, 16): a(f"v_add_f32 v32, v32, v{X2+i}")
        half_sum(32, 34)
        a("v_mul_f32 v32, 0x3d000000, v32")
        for i in range(16):
            a(f"v_sub_f32 v34, v{X2+i}, v32")
            if i == 0: a("v_mul_f32 v33, v34, v34")
            else: a("v_fmac_f32 v33, v34, v34")
        half_sum(33, 34)
        a("v_lshlrev_b32 v35, 3, v11")
        a("v_mov_b32 v36, 0x7fffffff")
        a("v_cmp_eq_u32 vcc, 0, v12")
        a("s_lshl_b32 s26, s28, 14")
        a(f"s_add_u32 s26, s26, {WS_ST:#x}")
        a("v_cndmask_b32 v36, v36, v35, vcc")
        a.vmem(f"buffer_store_dwordx2 v[32:33], v36, s[52:55], s26 offen {SC}", "st")
        a("s_lshl_b32 s32, s16, 1"); a("s_add_u32 s32, s32, s19"); a("s_lshl_b32 s32, s32, 1"); a("s_add_u32 s32, s32, s22")
        a("s_lshl_b32 s32, s32, 6")
        a("s_lshl_b32 s33, s28, 2"); a("s_add_u32 s33, s33, s32")
        a(f"s_add_u32 s26, s33, {WS_FLAG + FL_S:#x}")
        a("v_cmp_eq_u32 vcc, 0, v2")
        a("v_mov_b32 v16, 0x7fffffff")
        a("v_mov_b32 v17, 1")
        a("v_cndmask_b32 v16, v16, 0, vcc")
        a("v_lshlrev_b32 v13, 2, v4")
        a("v_lshl_add_u32 v35, v12, 17, v35")
        a.wait_vm0()
        a.vmem(f"buffer_store_dword v17, v16, s[52:55], s26 offen {SC}", "fl")
        a(f"s_add_u32 s26, s32, {WS_FLAG + FL_S:#x}")
        poll(a, "v13", "s26", "S")
        stamp(a, 7)
        SD = 128
        for b in range(8):
            a(f"s_mov_b32 s26, {WS_ST + b*16384:#x}")
            a.vmem(f"buffer_load_dwordx2 v[{SD+2*b}:{SD+2*b+1}], v35, s[52:55], s26 offen sc1", "sd")
        YF = 144
        for d in range(8):
            a(f"v_accvgpr_read_b32 v20, a{YT+d}")
            unpack_lo(a, YF+2*d, 20); unpack_hi(a, YF+2*d+1, 20)
        a.wait_vm("sd")
        a(f"v_add_f32 v32, v{SD}, v{SD+2}")
        for b in range(2, 8): a(f"v_add_f32 v32, v32, v{SD+2*b}")
        half_sum(32, 34)
        a("v_mul_f32 v32, 0x3d800000, v32")
        a(f"v_add_f32 v33, v{SD+1}, v{SD+3}")
        for b in range(2, 8): a(f"v_add_f32 v33, v33, v{SD+2*b+1}")
        a("v_mul_f32 v33, 0x3d000000, v33")
        for b in range(8):
            a(f"v_sub_f32 v34, v{SD+2*b}, v32")
            a("v_fmac_f32 v33, v34, v34")
        half_sum(33, 34)
        a("v_mul_f32 v33, 0x3d800000, v33")
        ln_scalars(a, [32], [33], 34)
        for d in range(8):
            x, y = X2+2*d, X2+2*d+1
            a(f"v_sub_f32 v20, v{x}, v32"); a(f"v_sub_f32 v21, v{y}, v32")
            round_bf16_pair(a, 20, 21, 22)
            a("v_mul_f32 v20, v20, v33"); a("v_mul_f32 v21, v21, v33")
            round_bf16_pair(a, 20, 21, 22)
            a(f"v_mul_f32 v20, v20, v{YF+2*d}"); a(f"v_mul_f32 v21, v21, v{YF+2*d+1}")
            round_bf16_pair(a, 20, 21, 22)
            a(f"v_add_f32 v20, v20, v{x}"); a(f"v_add_f32 v21, v21, v{y}")
            a(f"v_cvt_pk_bf16_f32 v{P+d}, v20, v21")
        a("v_lshrrev_b32 v35, 4, v11"); a("v_lshlrev_b32 v35, 14, v35")
        a("v_lshl_add_u32 v35, v12, 9, v35")
        a("v_lshl_add_u32 v35, v4, 4, v35")
        a("s_lshl_b32 s26, s28, 10")
        a(f"s_add_u32 s26, s26, {WS_X3U:#x}")
        a.vmem(f"buffer_store_dwordx4 v[{P}:{P+3}], v35, s[52:55], s26 offen {SC}", "xs")
        a.vmem(f"buffer_store_dwordx4 v[{P+4}:{P+7}], v35, s[52:55], s26 offen offset:256 {SC}", "xs")
        for d in range(8): a(f"v_accvgpr_write_b32 a{XM+d}, v{P+d}")
        a(f"s_add_u32 s26, s33, {WS_FLAG + FL_X:#x}")
        a.wait_vm0()
        a.vmem(f"buffer_store_dword v17, v16, s[52:55], s26 offen {SC}", "fl")
        stamp(a, 8)

    pre = [[] for _ in range(16)]
    for s in range(16):
        if s + LOOK < 16: pre[s] += a1_loads(s + LOOK)
    per = (len(late) + 4) // 5
    for i, s in enumerate(range(11, 16)): pre[s] += late[per*i: per*(i+1)]
    a.wait_vm("w1")
    a("s_barrier")
    stamp(a, 1)
    g1(0, pre, None)
    g2(0)
    a("s_lshl_b32 s26, s16, 2"); a("s_add_u32 s26, s26, s18"); a("s_lshl_b32 s26, s26, 6")
    a(f"s_add_u32 s26, s26, {WS_FLAG + FL_X:#x}")
    a("s_lshl_b32 s32, s16, 2"); a("s_add_u32 s32, s32, s18"); a("s_lshl_b32 s32, s32, 15")
    a(f"s_add_u32 s32, s32, {WS_X3U:#x}")
    a("v_add_u32 v7, 16384, v3")
    for d in range(4): a(f"v_mov_b32 v{ONES+d}, 0x3f803f80")
    poll(a, "v13", "s26", "X")
    stamp(a, 9)
    for s in range(16):
        for rt in range(2):
            r = AF + 8*s + 4*rt
            a.vmem(f"buffer_load_dwordx4 v[{r}:{r+3}], {('v3','v7')[rt]}, s[52:55], s32 offen offset:{1024*(s&3)} sc1", f"A{s}_{rt}")
        if (s & 3) == 3: a("s_add_u32 s32, s32, 4096")
    g1(1, [[] for _ in range(16)], None)
    g2(1)
    if STAMPS:
        a.wait_vm0()
        a("s_memrealtime s[70:71]"); a("s_waitcnt lgkmcnt(0)")
        a("v_writelane_b32 v15, s70, 16")
        a("s_lshl_b32 s26, s2, 2"); a("s_add_u32 s26, s26, s18"); a("s_lshl_b32 s26, s26, 8")
        a(f"s_add_u32 s26, s26, {WS_STAMP:#x}")
        a("v_lshlrev_b32 v13, 2, v2")
        a("buffer_store_dword v15, v13, s[52:55], s26 offen")
    a.label("K2_END")
    a("s_endpgm")
    return a.text()

def build(kernels, path):
    out = []
    for (label, text, vgpr, accum, lds, block) in kernels:
        out.append(f"; @launch kernel={label} grid=(256,1,1) block=({block},1,1) lds={lds}")
    out.append('.amdgcn_target "amdgcn-amd-amdhsa--gfx950"')
    out.append(".text")
    seen = set()
    for (label, text, vgpr, accum, lds, block) in kernels:
        if label in seen: continue
        seen.add(label)
        out.append(kernel_header(label) + text)
    out.append('.section .rodata,"a"')
    seen = set()
    for (label, text, vgpr, accum, lds, block) in kernels:
        if label in seen: continue
        seen.add(label)
        out.append(".p2align 6")
        out.append(kernel_desc(label, vgpr, accum))
    open(path, "w").write("\n".join(out) + "\n")

if __name__ == "__main__":
    path = sys.argv[1] if len(sys.argv) > 1 else f"cdna_kernels/{NAME}.s"
    ks = []
    t, v = gen_k0(); ks.append(("k0_kernel", t, v, v, 0, 256))
    t, v = gen_k1(); ks.append(("k1_kernel", t, v, v, K1_LDS, 256))
    if "gen_k2" in globals():
        t = gen_k2(); ks.append(("k2_kernel", t, 512, 256, 163840, 256))
    nempty = int(os.environ.get("NEMPTY", "0"))
    for i in range(nempty): ks.append(("e_kernel", "    s_endpgm\n", 8, 8, 0, 256))
    build(ks, path)
```

```python
import sys
from asmlib import *

NAME = "interleave_layers__ssm_conv_h3__dense_activation_squared_relu__prompt"
KA_Q, KA_K, KA_V, KA_SK, KA_H, KA_D, KA_BX, KA_W1, KA_B1, KA_W2, KA_B2, KA_OUT, KA_DBG, KA_WS = [8*i for i in range(14)]
import os
PS = int(os.environ.get('PS', '8320'))
STS = int(os.environ.get('STS', '16512'))
WS_UP, WS_QP, WS_YP, WS_X1P = 0x000000, 0x220000, 0x440000, 0x660000
WS_QST  = 0x880000
WS_C1P  = 0x890000
WS_C1   = 0x8b0000
WS_B1F  = 0x8b2000
WS_FLAG = 0x8c0000
FLAG_BYTES = 0x5000
WS_ST   = 0x220000
WS_ST2  = 0x270000
WS_W1P  = 0x900000
WS_W2P  = 0xB00000
WS_X3U  = 0x000000
WS_H1   = 0x1000000
WS_H2   = 0x1800000
WS_SIZE = 0x2000000
MASKHI = "0xffff0000"
WS_STAMP = 0xF00000
import os
STAMPS = bool(os.environ.get("STAMPS"))
PREFETCH = int(os.environ.get("PREFETCH", "1"))
K1SC = os.environ.get("K1SC", "sc0 sc1")
FORCE_SLOW = int(os.environ.get("FORCE_SLOW", "0"))
W2SPLIT = int(os.environ.get("W2SPLIT", "4"))
A0LOOK = int(os.environ.get("A0LOOK", "3"))
W1AHEAD = int(os.environ.get("W1AHEAD", "1"))
NOLATE = int(os.environ.get("NOLATE", "0"))
FINE = int(os.environ.get("FINE", "0"))
G2LOOK = int(os.environ.get("G2LOOK", "10"))
G1LOOK = int(os.environ.get("G1LOOK", "8"))

def stamp(a, idx, reg=15):
    if not STAMPS: return
    a("s_memrealtime s[70:71]")
    a("s_memtime s[72:73]")
    a("s_waitcnt lgkmcnt(0)"); a.lg = []; a.smem = False
    a(f"v_writelane_b32 v{reg}, s70, {idx}")
    a(f"v_writelane_b32 v{reg}, s72, {idx+32}")
def stamp_flush(a, kidx, idx, reg, t1):
    if not STAMPS: return
    a.wait_vm0()
    stamp(a, idx, reg)
    a(f"v_lshlrev_b32 v{t1}, 2, v0")
    a("s_lshl_b32 s70, s2, 10")
    a(f"s_add_u32 s70, s70, {WS_STAMP + kidx*0x40000:#x}")
    a(f"buffer_store_dword v{reg}, v{t1}, s[52:55], s70 offen")
def unpack_lo(a, d, s): a(f"v_lshlrev_b32 v{d}, 16, v{s}")
def unpack_hi(a, d, s): a(f"v_and_b32 v{d}, {MASKHI}, v{s}")

def wave_sum(a, regs, tmps):
    n = len(regs)
    def pad():
        if n < 3: a.nop(3 - n)
    for sh in (8, 4, 2, 1):
        pad()
        for r in regs: a(f"v_add_f32_dpp v{r}, v{r}, v{r} row_ror:{sh} row_mask:0xf bank_mask:0xf")
    quad_sum(a, regs, tmps)

def quad_sum(a, regs, tmps):
    for op in ("v_permlane16_swap_b32", "v_permlane32_swap_b32"):
        for r, t in zip(regs, tmps): a(f"v_mov_b32 v{t}, v{r}")
        a.nop(2)
        for r, t in zip(regs, tmps): a(f"{op} v{r}, v{t}")
        a.nop(1)
        for r, t in zip(regs, tmps): a(f"v_add_f32 v{r}, v{r}, v{t}")

def round_bf16_pair(a, x, y, t):
    a(f"v_cvt_pk_bf16_f32 v{t}, v{x}, v{y}")
    unpack_lo(a, x, t); unpack_hi(a, y, t)

def gen_k0():
    a = Asm()
    a("s_cmp_ge_u32 s2, 256")
    a("s_cbranch_scc1 K0_END")
    a.sload(f"s_load_dwordx4 s[4:7], s[0:1], {KA_Q}")
    a.sload(f"s_load_dwordx4 s[8:11], s[0:1], {KA_V}")
    a.sload(f"s_load_dwordx2 s[12:13], s[0:1], {KA_W1}")
    a.sload(f"s_load_dwordx2 s[14:15], s[0:1], {KA_WS}")
    a.sload(f"s_load_dwordx2 s[60:61], s[0:1], {KA_W2}")
    a("s_and_b32 s16, s2, 7")
    a("s_lshr_b32 s17, s2, 3")
    a("v_lshrrev_b32 v1, 5, v0")
    a("v_and_b32 v2, 31, v0")
    a("s_lshl_b32 s18, s17, 16")
    a("s_lshl_b32 s19, s16, 7")
    a("s_add_u32 s18, s18, s19")
    a("v_lshlrev_b32 v3, 13, v1")
    a("v_lshl_add_u32 v3, v2, 2, v3")
    a("v_add_u32 v3, s18, v3")
    a("v_add_u32 v4, 0x1000, v3")
    a("v_subrev_u32 v5, 0xc00, v3")
    a("s_lshl_b32 s19, s16, 9")
    a("v_lshlrev_b32 v6, 4, v2")
    a("v_add_u32 v6, s19, v6")
    a("v_lshrrev_b32 v7, 6, v0")
    a("v_and_b32 v8, 63, v0")
    a("s_lshl_b32 s19, s2, 13")
    a("v_lshlrev_b32 v9, 11, v7")
    a("v_lshl_add_u32 v9, v8, 4, v9")
    a("v_add_u32 v9, s19, v9")
    a("s_lshr_b32 s20, s2, 4")
    a("s_and_b32 s21, s2, 15")
    a("v_and_b32 v10, 15, v8")
    a("v_lshl_add_u32 v10, v7, 4, v10")
    a("v_lshrrev_b32 v11, 4, v8")
    a("v_and_b32 v12, 1, v11")
    a("v_lshlrev_b32 v12, 4, v12")
    a("v_lshrrev_b32 v13, 1, v11")
    a("v_lshl_add_u32 v12, v13, 2, v12")
    a("s_lshl_b32 s22, s21, 5")
    a("v_add_u32 v12, s22, v12")
    a("v_mul_u32_u24 v12, 3584, v12")
    a("s_mul_i32 s22, s20, 224")
    a("v_lshl_add_u32 v12, v10, 2, v12")
    a("v_add_u32 v12, s22, v12")
    a("v_cmp_gt_u32 vcc, 56, v10")
    a("v_mov_b32 v14, 0x7fffffff")
    a("s_nop 0")
    a("v_cndmask_b32 v12, v14, v12, vcc")
    a("v_lshrrev_b32 v13, 3, v10")
    a("v_lshlrev_b32 v13, 10, v13")
    a("v_lshl_add_u32 v13, v11, 8, v13")
    a("v_and_b32 v15, 7, v10")
    a("v_lshl_add_u32 v13, v15, 5, v13")
    a("s_mul_i32 s22, s20, 114688")
    a("s_mul_i32 s23, s21, 7168")
    a("s_add_u32 s22, s22, s23")
    a(f"s_add_u32 s22, s22, {WS_W1P:#x}")
    a("v_add_u32 v13, s22, v13")
    a("v_cndmask_b32 v13, v14, v13, vcc")
    a("s_mul_i32 s22, s20, 448")
    a("s_add_u32 s22, s22, s23")
    a(f"s_add_u32 s22, s22, {WS_C1P:#x}")
    a("v_lshlrev_b32 v15, 3, v10")
    a("v_add_u32 v15, s22, v15")
    a("v_cndmask_b32 v15, v14, v15, vcc")
    a("v_cmp_eq_u32 vcc, 0, v11")
    a("s_nop 1")
    a("v_cndmask_b32 v15, v14, v15, vcc")
    for e, r in enumerate((1, 2, 3, 8, 9, 10, 11)):
        a(f"s_mov_b32 s{24+e}, {r*3584}")
    a.wait_lg0()
    if STAMPS: a("v_mov_b32 v118, 0")
    stamp(a, 0, 118)
    a.srd(32, 4, 0x200000)
    a.srd(36, 6, 0x200000)
    a.srd(40, 8, 0x200000)
    a.srd(44, 10, 4096)
    a.srd(48, 12, 512*3584)
    a.srd(52, 14, WS_SIZE)
    def rowoff(r):
        if r < 0: return ("v5", (r+3)*1024)
        if r < 4: return ("v3", r*1024)
        return ("v4", (r-4)*1024)
    a.vmem("buffer_load_dwordx4 v[44:47], v6, s[44:47], 0 offen", "sk")
    for r in range(-3, 8):
        vo, off = rowoff(r)
        a.vmem(f"buffer_load_dword v{19+r}, {vo}, s[36:39], 0 offen offset:{off}", f"k{r}")
        if r >= 0:
            a.vmem(f"buffer_load_dword v{28+r}, {vo}, s[40:43], 0 offen offset:{off}", f"v{r}")
    for r in range(8):
        vo, off = rowoff(r)
        a.vmem(f"buffer_load_dword v{36+r}, {vo}, s[32:35], 0 offen offset:{off}", f"q{r}")
    a.vmem("buffer_load_dwordx4 v[48:51], v9, s[32:35], 0 offen", "qs0")
    a.vmem("buffer_load_dwordx4 v[52:55], v9, s[32:35], 0 offen offset:1024", "qs1")
    so = ["0"] + [f"s{24+e}" for e in range(7)]
    for e in range(8):
        a.vmem(f"buffer_load_dword v{56+e}, v12, s[48:51], {so[e]} offen", f"w{e}")
    a("v_and_b32 v120, 15, v0")
    a("v_lshl_add_u32 v121, v7, 2, v11")
    a("v_lshrrev_b32 v122, 1, v121")
    a("v_and_b32 v123, 1, v121")
    a("v_lshrrev_b32 v124, 1, v122")
    a("v_lshlrev_b32 v124, 5, v124")
    a("v_and_b32 v125, 1, v122")
    a("v_lshl_add_u32 v124, v125, 3, v124")
    a("v_cmp_eq_u32 vcc, 6, v122")
    a("v_lshlrev_b32 v125, 2, v123")
    a("v_lshlrev_b32 v126, 3, v123")
    a("v_cndmask_b32 v125, v125, v126, vcc")
    a("v_add_u32 v124, v124, v125")
    a("v_mov_b32 v125, 16")
    a("v_cndmask_b32 v125, v125, 4, vcc")
    a("s_mul_i32 s22, s20, 112")
    a("v_add_u32 v124, s22, v124")
    a("v_lshlrev_b32 v124, 10, v124")
    a("s_lshl_b32 s22, s21, 6")
    a("v_lshl_add_u32 v124, v120, 2, v124")
    a("v_add_u32 v124, s22, v124")
    a("v_lshl_add_u32 v125, v125, 10, v124")
    a("v_cmp_gt_u32 vcc, 14, v121")
    a("s_lshr_b32 s22, s21, 1")
    a("s_mul_i32 s22, s22, 229376")
    a("s_and_b32 s23, s21, 1")
    a("s_lshl_b32 s23, s23, 10")
    a("s_add_u32 s22, s22, s23")
    a("s_mul_i32 s23, s20, 14336")
    a("s_add_u32 s22, s22, s23")
    a(f"s_add_u32 s22, s22, {WS_W2P:#x}")
    a("v_lshlrev_b32 v126, 11, v122")
    a("v_lshl_add_u32 v126, v123, 9, v126")
    a("v_lshl_add_u32 v126, v120, 5, v126")
    a("v_add_u32 v126, s22, v126")
    a("v_cndmask_b32 v124, v14, v124, vcc")
    a("v_cndmask_b32 v125, v14, v125, vcc")
    a("v_cndmask_b32 v126, v14, v126, vcc")
    a.srd(56, 60, 1792*1024)
    for e in range(8):
        a.vmem(f"buffer_load_dword v{128+e}, {'v124' if e<4 else 'v125'}, s[56:59], 0 offen offset:{1024*(e&3)}", "w2")
    a("s_lshl_b32 s19, s2, 12")
    a("v_lshlrev_b32 v64, 4, v0")
    a("v_add_u32 v64, s19, v64")
    a(f"v_cmp_gt_u32 vcc, {FLAG_BYTES:#x}, v64")
    a(f"v_add_u32 v64, {WS_FLAG:#x}, v64")
    a("v_mov_b32 v68, 0"); a("v_mov_b32 v69, 0"); a("v_mov_b32 v70, 0"); a("v_mov_b32 v71, 0")
    a("v_cndmask_b32 v64, v14, v64, vcc")
    a.vmem("buffer_store_dwordx4 v[68:71], v64, s[52:55], 0 offen", "fl")
    a(f"s_mul_i32 s19, s16, {32*PS}")
    a("s_lshl_b32 s22, s17, 8")
    a("s_add_u32 s19, s19, s22")
    a(f"v_mul_u32_u24 v65, {PS}, v2")
    a("v_lshl_add_u32 v65, v1, 5, v65")
    a("v_add_u32 v65, s19, v65")
    a.wait_vm("sk")
    unpack_lo(a, 72, 44); unpack_hi(a, 73, 44); unpack_lo(a, 74, 45); unpack_hi(a, 75, 45)
    unpack_lo(a, 76, 46); unpack_hi(a, 77, 46); unpack_lo(a, 78, 47); unpack_hi(a, 79, 47)
    def kl(r): return 80 + r + 3
    def kh(r): return 92 + r + 3
    U = 104
    for r in range(-3, 8):
        a.wait_vm(f"k{r}")
        unpack_lo(a, kl(r), 19+r); unpack_hi(a, kh(r), 19+r)
        if r < 0: continue
        i = r
        A0, A1, P0, P1, T = 112, 113, 114, 115, 116
        a(f"v_mul_f32 v{A0}, v{kl(i-3)}, v75"); a(f"v_mul_f32 v{A1}, v{kh(i-3)}, v79")
        round_bf16_pair(a, A0, A1, T)
        for tap in (2, 1, 0):
            a(f"v_mul_f32 v{P0}, v{kl(i-tap)}, v{72+tap}"); a(f"v_mul_f32 v{P1}, v{kh(i-tap)}, v{76+tap}")
            round_bf16_pair(a, P0, P1, T)
            a(f"v_add_f32 v{A0}, v{A0}, v{P0}"); a(f"v_add_f32 v{A1}, v{A1}, v{P1}")
            round_bf16_pair(a, A0, A1, T)
        a.wait_vm(f"v{i}")
        unpack_lo(a, P0, 28+i); unpack_hi(a, P1, 28+i)
        a(f"v_mul_f32 v{A0}, v{A0}, v{P0}"); a(f"v_mul_f32 v{A1}, v{A1}, v{P1}")
        a(f"v_cvt_pk_bf16_f32 v{U+i}, v{A0}, v{A1}")
        if i == 3: a.vmem(f"buffer_store_dwordx4 v[{U}:{U+3}], v65, s[52:55], 0 offen", "su0")
        if i == 7: a.vmem(f"buffer_store_dwordx4 v[{U+4}:{U+7}], v65, s[52:55], 0 offen offset:16", "su1")
    stamp(a, 1, 118)
    a.wait_vm("q7")
    a(f"s_mov_b32 s19, {WS_QP:#x}")
    a.vmem("buffer_store_dwordx4 v[36:39], v65, s[52:55], s19 offen", "sq0")
    a.vmem("buffer_store_dwordx4 v[40:43], v65, s[52:55], s19 offen offset:16", "sq1")
    a.wait_vm("qs1")
    for r in range(2):
        for d in range(4):
            unpack_lo(a, 80+8*r+2*d, 48+4*r+d); unpack_hi(a, 81+8*r+2*d, 48+4*r+d)
    for r in range(2):
        b = 80+8*r
        a(f"v_add_f32 v{96+r}, v{b}, v{b+1}")
        for e in range(2, 8): a(f"v_add_f32 v{96+r}, v{96+r}, v{b+e}")
    wave_sum(a, [96, 97], [98, 99])
    for r in range(2): a(f"v_mul_f32 v{96+r}, 0x3b000000, v{96+r}")
    for r in range(2):
        b = 80+8*r
        for e in range(8): a(f"v_sub_f32 v{b+e}, v{b+e}, v{96+r}")
        a(f"v_mul_f32 v{100+r}, v{b}, v{b}")
        for e in range(1, 8): a(f"v_fmac_f32 v{100+r}, v{b+e}, v{b+e}")
    wave_sum(a, [100, 101], [98, 99])
    for r in range(2): a(f"v_mul_f32 v{100+r}, 0x3b000000, v{100+r}")
    round_bf16_pair(a, 96, 97, 98)
    round_bf16_pair(a, 100, 101, 98)
    for r in range(2): a(f"v_add_f32 v{100+r}, 0x3727c5ac, v{100+r}")
    round_bf16_pair(a, 100, 101, 98)
    for r in range(2): a(f"v_sqrt_f32 v{100+r}, v{100+r}")
    a.nop(1)
    round_bf16_pair(a, 100, 101, 98)
    for r in range(2): a(f"v_rcp_f32 v{100+r}, v{100+r}")
    a.nop(1)
    a("v_mov_b32 v80, v96"); a("v_mov_b32 v81, v100"); a("v_mov_b32 v82, v97"); a("v_mov_b32 v83, v101")
    a("s_lshl_b32 s19, s2, 6")
    a(f"s_add_u32 s19, s19, {WS_QST:#x}")
    a("v_lshlrev_b32 v84, 4, v7")
    a("v_cmp_eq_u32 vcc, 0, v8")
    a("v_add_u32 v84, s19, v84")
    a("s_nop 0")
    a("v_cndmask_b32 v84, v14, v84, vcc")
    a.vmem("buffer_store_dwordx4 v[80:83], v84, s[52:55], 0 offen", "sst")
    a("s_mov_b32 s22, 0x05040100"); a("s_mov_b32 s23, 0x07060302")
    a.wait_vm("w7")
    for d in range(4):
        a(f"v_perm_b32 v{16+d}, v{57+2*d}, v{56+2*d}, s22")
        a(f"v_perm_b32 v{20+d}, v{57+2*d}, v{56+2*d}, s23")
    a.vmem("buffer_store_dwordx4 v[16:19], v13, s[52:55], 0 offen", "sw0")
    a.vmem("buffer_store_dwordx4 v[20:23], v13, s[52:55], 0 offen offset:16", "sw1")
    for e in range(8):
        unpack_lo(a, 88+e, 56+e); unpack_hi(a, 96+e, 56+e)
    a("v_add_f32 v24, v88, v89"); a("v_add_f32 v25, v96, v97")
    for e in range(2, 8):
        a(f"v_add_f32 v24, v24, v{88+e}"); a(f"v_add_f32 v25, v25, v{96+e}")
    quad_sum(a, [24, 25], [26, 27])
    a.vmem("buffer_store_dwordx2 v[24:25], v15, s[52:55], 0 offen", "sc")
    a.wait_vm("w2")
    for d in range(4):
        a(f"v_perm_b32 v{136+d}, v{129+2*d}, v{128+2*d}, s22")
        a(f"v_perm_b32 v{140+d}, v{129+2*d}, v{128+2*d}, s23")
    a.vmem("buffer_store_dwordx4 v[136:139], v126, s[52:55], 0 offen", "sw2")
    a.vmem("buffer_store_dwordx4 v[140:143], v126, s[52:55], 0 offen offset:16", "sw2")
    stamp(a, 2, 118)
    stamp_flush(a, 0, 3, 118, 117)
    a.label("K0_END")
    a("s_endpgm")
    return a.text(), 144

L_UR = [0x0000, 0x1200]
L_HE = [0x2400, 0x2400 + 8320]
L_HO = [0x2400 + 4160, 0x2400 + 12480]
L_XC = 0x6800
K1_LDS = L_XC + 32768


class Fill:
    def __init__(self): self.q = []
    def add(self, f): self.q.append(f)
    def ins(self, a, s): self.q.append(lambda: a(s))
    def emit(self, n=1):
        for _ in range(n):
            if self.q: self.q.pop(0)()
    def flush(self):
        while self.q: self.q.pop(0)()

def gen_k1():
    a = Asm()
    ACC = 24; AS = [56, 120]; BS = [88, 152]
    EU, EQ, ES, ED, W2R, W2O, UD = 184, 192, 200, 216, 220, 228, 236
    a("s_cmp_ge_u32 s2, 256")
    a("s_cbranch_scc1 K1_END")
    a.sload(f"s_load_dwordx4 s[4:7], s[0:1], {KA_H}")
    a.sload(f"s_load_dwordx4 s[8:11], s[0:1], {KA_B1}")
    a.sload(f"s_load_dwordx2 s[14:15], s[0:1], {KA_WS}")
    a("s_and_b32 s16, s2, 7")
    a("s_lshr_b32 s17, s2, 3")
    a("s_lshl_b32 s16, s16, 5")
    a("s_add_u32 s16, s16, s17")
    a(f"s_mul_i32 s18, s16, {PS}")
    a("s_lshl_b32 s48, s16, 13")
    a("v_lshrrev_b32 v1, 6, v0")
    a("v_and_b32 v2, 63, v0")
    a("v_and_b32 v3, 15, v0")
    a("v_bfe_u32 v4, v0, 4, 2")
    a("v_lshlrev_b32 v5, 5, v0")
    a("v_lshlrev_b32 v6, 4, v0")
    a("v_mov_b32 v14, 0x7fffffff")
    a("v_subrev_u32 v7, 4, v6")
    a("v_cmp_eq_u32 vcc, 0, v0")
    a("v_readfirstlane_b32 s19, v1")
    a("s_nop 0")
    a("v_cndmask_b32 v7, v7, v14, vcc")
    a("v_lshlrev_b32 v8, 9, v1")
    a("v_lshl_add_u32 v8, v3, 4, v8")
    a("v_lshl_add_u32 v8, v4, 2, v8")
    a("v_lshlrev_b32 v9, 3, v8")
    a("v_lshlrev_b32 v8, 2, v8")
    a.wait_lg0()
    if STAMPS: a("v_mov_b32 v219, 0")
    stamp(a, 0, 219)
    a.srd(32, 4, 0x200000)
    a.srd(52, 14, WS_SIZE)
    if PREFETCH:
        a("s_cmp_ge_u32 s19, 4")
        a("s_cbranch_scc1 K1_HELP")
    a("s_add_u32 s24, s48, 4096")
    U0, H0, H1, HP = 56, 64, 68, 72
    a.vmem(f"buffer_load_dwordx4 v[{U0}:{U0+3}], v5, s[52:55], s18 offen", "u0")
    a.vmem(f"buffer_load_dwordx4 v[{U0+4}:{U0+7}], v5, s[52:55], s18 offen offset:16", "u1")
    a.vmem(f"buffer_load_dwordx4 v[{H0}:{H0+3}], v6, s[32:35], s48 offen", "h0")
    a.vmem(f"buffer_load_dword v{HP}, v7, s[32:35], s48 offen", "h0p")
    a.vmem(f"buffer_load_dwordx4 v[{H1}:{H1+3}], v6, s[32:35], s24 offen", "h1")
    a.vmem(f"buffer_load_dword v{HP+1}, v7, s[32:35], s24 offen", "h1p")
    a.srd(36, 6, 1024)
    a.srd(40, 8, 3584)
    a.srd(44, 10, 1792*1024)
    a(f"s_add_u32 s25, s18, {WS_QP:#x}")
    a(f"s_mov_b32 s26, {WS_QST:#x}")
    a("s_lshl_b32 s27, s16, 2")
    a("v_mov_b32 v17, 0")
    for pp in range(2):
        a.vmem(f"buffer_load_dwordx4 v[{EU+4*pp}:{EU+3+4*pp}], v8, s[52:55], s18 offen offset:{1024*pp}", "e")
        a.vmem(f"buffer_load_dwordx4 v[{EQ+4*pp}:{EQ+3+4*pp}], v8, s[52:55], s25 offen offset:{1024*pp}", "e")
        a.vmem(f"buffer_load_dwordx4 v[{ES+8*pp}:{ES+3+8*pp}], v9, s[52:55], s26 offen offset:{2048*pp}", "e")
        a.vmem(f"buffer_load_dwordx4 v[{ES+4+8*pp}:{ES+7+8*pp}], v9, s[52:55], s26 offen offset:{2048*pp+16}", "e")
    a.vmem(f"buffer_load_dword v{ED}, v17, s[36:39], s27 offen", "e")
    a("s_lshl_b32 s20, s2, 8")
    a("v_add_u32 v10, s20, v0")
    a("v_cmp_gt_u32 vcc, 1792, v10")
    a("v_lshlrev_b32 v15, 2, v10")
    a("v_lshlrev_b32 v16, 1, v10")
    a("v_cndmask_b32 v15, v14, v15, vcc")
    a("s_cmp_ge_u32 s2, 7")
    a("s_cbranch_scc1 K1_NOC1")
    for s_ in range(16):
        a(f"s_mov_b32 s21, {WS_C1P + 7168*s_:#x}")
        a(f"buffer_load_dword v{220+s_}, v15, s[52:55], s21 offen")
    a("buffer_load_ushort v16, v16, s[40:43], 0 offen")
    a.label("K1_NOC1")
    a.vmem(f"buffer_load_dword v{ED+3-0 if False else 13}, v17, s[36:39], 0 offen", "e")
    Z = 76
    for d in range(4): a(f"v_mov_b32 v{Z+d}, 0")
    a("v_lshrrev_b32 v18, 5, v0")
    a(f"v_mul_u32_u24 v18, {L_UR[1]}, v18")
    a("v_and_b32 v19, 31, v0")
    a("v_lshl_add_u32 v18, v19, 4, v18")
    a("v_add_u32 v18, 4096, v18")
    a("v_subrev_u32 v19, 64, v0")
    a("v_lshrrev_b32 v20, 1, v19")
    a("v_mul_u32_u24 v20, 4160, v20")
    a("v_and_b32 v21, 1, v19")
    a("v_lshl_add_u32 v20, v21, 4, v20")
    a(f"v_add_u32 v20, {L_HE[0]}, v20")
    a("v_cmp_gt_u32 vcc, 64, v0")
    a("s_nop 1")
    a("v_cndmask_b32 v18, v20, v18, vcc")
    a("v_cmp_gt_u32 vcc, 72, v0")
    a("s_and_saveexec_b64 s[28:29], vcc")
    a.lds(f"ds_write_b128 v18, v[{Z}:{Z+3}]", "pad")
    a("s_mov_b64 exec, s[28:29]")
    a("s_and_b32 s24, s19, 1")
    a("s_lshr_b32 s25, s19, 1")
    a("v_and_b32 v10, 1, v3")
    a("v_cmp_eq_u32 vcc, 1, v10")
    a(f"v_mov_b32 v11, {L_HO[0]+32+20}")
    a(f"v_mov_b32 v12, {L_HE[0]+32+18}")
    a("v_cndmask_b32 v10, v11, v12, vcc")
    a("v_lshl_add_u32 v10, v3, 1, v10")
    a("v_lshlrev_b32 v11, 4, v4")
    a("v_sub_u32 v10, v10, v11")
    a("s_mul_i32 s26, s24, 8320")
    a("s_lshl_b32 s27, s25, 8")
    a("s_add_u32 s26, s26, s27")
    a("v_add_u32 v18, s26, v10")
    for k in range(1, 4): a(f"v_add_u32 v{18+k}, {1024*k}, v18")
    a(f"s_mul_i32 s26, s24, {L_UR[1]}")
    a("s_add_u32 s26, s26, s27")
    a("s_add_u32 s26, s26, 528")
    a("v_lshlrev_b32 v22, 5, v3")
    a("v_lshl_add_u32 v22, v4, 4, v22")
    a("v_sub_u32 v22, s26, v22")
    a("s_mov_b32 s22, 0x05040100"); a("s_mov_b32 s23, 0x07060302")
    a("v_sub_u32 v23, 4080, v6")
    a.wait_vm("u1")
    R0 = 80
    for d in range(4):
        a(f"v_perm_b32 v{R0+d}, v{U0+6-2*d}, v{U0+7-2*d}, s22")
        a(f"v_perm_b32 v{R0+4+d}, v{U0+6-2*d}, v{U0+7-2*d}, s23")
    a.lds(f"ds_write_b128 v23, v[{R0}:{R0+3}] offset:{L_UR[0]}", "ur")
    a.lds(f"ds_write_b128 v23, v[{R0+4}:{R0+7}] offset:{L_UR[1]}", "ur")
    for ch, (H, P) in enumerate(((H0, HP), (H1, HP+1))):
        a.wait_vm(f"h{ch}p")
        a.lds(f"ds_write_b128 v6, v[{H}:{H+3}] offset:{L_HE[ch]+32}", "he")
        O = 88 + 4*ch
        a(f"v_alignbit_b32 v{O}, v{H}, v{P}, 16")
        for d in range(1, 4): a(f"v_alignbit_b32 v{O+d}, v{H+d}, v{H+d-1}, 16")
        a.lds(f"ds_write_b128 v6, v[{O}:{O+3}] offset:{L_HO[ch]+32}", "ho")
    a.wait_lg0()
    a("s_barrier")
    stamp(a, 1, 219)
    F = Fill()
    T0, T1 = 252, 253
    F.add(lambda: a.wait_vm("e"))
    F.ins(a, f"v_lshlrev_b32 v{ED+1}, 16, v{ED}"); F.ins(a, f"v_and_b32 v{ED+2}, {MASKHI}, v{ED}")
    for e in range(8):
        m, r = ES + 2*e, ES + 2*e + 1
        F.ins(a, f"v_lshlrev_b32 v{T0}, 16, v{EU+e}"); F.ins(a, f"v_and_b32 v{T1}, {MASKHI}, v{EU+e}")
        F.ins(a, f"v_mul_f32 v{T0}, v{T0}, v{ED+1}"); F.ins(a, f"v_mul_f32 v{T1}, v{T1}, v{ED+2}")
        F.ins(a, f"v_cvt_pk_bf16_f32 v{T0}, v{T0}, v{T1}")
        F.ins(a, f"v_lshlrev_b32 v{UD+2*e}, 16, v{T0}"); F.ins(a, f"v_and_b32 v{UD+2*e+1}, {MASKHI}, v{T0}")
        F.ins(a, f"v_lshlrev_b32 v{T0}, 16, v{EQ+e}"); F.ins(a, f"v_and_b32 v{T1}, {MASKHI}, v{EQ+e}")
        F.ins(a, f"v_sub_f32 v{T0}, v{T0}, v{m}"); F.ins(a, f"v_sub_f32 v{T1}, v{T1}, v{m}")
        F.ins(a, f"v_cvt_pk_bf16_f32 v{T0}, v{T0}, v{T1}")
        F.ins(a, f"v_and_b32 v{T1}, {MASKHI}, v{T0}"); F.ins(a, f"v_lshlrev_b32 v{T0}, 16, v{T0}")
        F.ins(a, f"v_mul_f32 v{T0}, v{T0}, v{r}"); F.ins(a, f"v_mul_f32 v{T1}, v{T1}, v{r}")
        F.ins(a, f"v_cvt_pk_bf16_f32 v{T0}, v{T0}, v{T1}")
        F.ins(a, f"v_lshlrev_b32 v{m}, 16, v{T0}"); F.ins(a, f"v_and_b32 v{r}, {MASKHI}, v{T0}")
    def load_frags(rp):
        st = rp & 1; out = []
        for n in range(8):
            A = AS[st] + 4*n; B = BS[st] + 4*n
            o = 128*(n & 1) + 16*rp
            out.append(lambda A=A, n=n, o=o: a.lds(f"ds_read2_b32 v[{A}:{A+1}], v{18+(n>>1)} offset0:{o} offset1:{o+1}", f"A{rp}_{n}"))
            out.append(lambda A=A, n=n, o=o: a.lds(f"ds_read2_b32 v[{A+2}:{A+3}], v{18+(n>>1)} offset0:{o+2} offset1:{o+3}", f"A{rp}_{n}b"))
            out.append(lambda B=B, n=n: a.lds(f"ds_read_b128 v[{B}:{B+3}], v22 offset:{512*(7-n)+64*rp}", f"B{rp}_{n}"))
        return out
    pend = load_frags(0)
    for f in pend[:12]: f()
    pend = pend[12:]
    first = [True]*8
    for rp in range(4):
        st = rp & 1
        if rp < 3: pend += load_frags(rp+1)
        pairs = sorted([(x, c) for x in range(8) for c in range(8) if x + c <= 7], key=lambda t: (max(t), t[0]+t[1]))
        for (x, c) in pairs:
            p = x + c
            need = [f"A{rp}_{x}b", f"B{rp}_{c}"]
            a.wait_lg(need)
            A = AS[st] + 4*x; B = BS[st] + 4*c; C = ACC + 4*p
            src = "0" if first[p] else f"v[{C}:{C+3}]"
            first[p] = False
            a(f"v_mfma_f32_16x16x32_bf16 v[{C}:{C+3}], v[{A}:{A+3}], v[{B}:{B+3}], {src}")
            if pend: pend.pop(0)()
            if rp >= 1: F.emit(2 if not pend else 1)
    F.flush()
    stamp(a, 2, 219)
    a("v_lshlrev_b32 v10, 4, v2")
    a("v_lshl_add_u32 v11, v1, 13, v10")
    a("v_lshl_add_u32 v12, v1, 11, v10")
    a.nop(8)
    for p in range(8):
        a.lds(f"ds_write_b128 v11, v[{ACC+4*p}:{ACC+4*p+3}] offset:{L_XC+1024*p}", "xw")
    a.wait_lg0()
    a("s_barrier")
    X = 56
    for pp in range(2):
        for src in range(4):
            r = X + 16*pp + 4*src
            a.lds(f"ds_read_b128 v[{r}:{r+3}], v12 offset:{L_XC+8192*src+1024*pp}", f"x{pp}")
    YO, XO = 96, 104
    a(f"s_add_u32 s25, s18, {WS_YP:#x}")
    a(f"s_add_u32 s26, s18, {WS_X1P:#x}")
    for pp in range(2):
        a.wait_lg(f"x{pp}")
        for i in range(4):
            e = 4*pp + i
            r = X + 16*pp + i
            a(f"v_add_f32 v{T0}, v{r}, v{r+8}"); a(f"v_add_f32 v{T1}, v{r+4}, v{r+12}")
            round_bf16_pair(a, T0, T1, 254)
            a(f"v_add_f32 v{T0}, v{T0}, v{UD+2*e}"); a(f"v_add_f32 v{T1}, v{T1}, v{UD+2*e+1}")
            a(f"v_cvt_pk_bf16_f32 v{YO+e}, v{T0}, v{T1}")
            unpack_lo(a, T0, YO+e); unpack_hi(a, T1, YO+e)
            a(f"v_mul_f32 v{T0}, v{T0}, v{ES+2*e}"); a(f"v_mul_f32 v{T1}, v{T1}, v{ES+2*e+1}")
            round_bf16_pair(a, T0, T1, 254)
            unpack_lo(a, 254, EQ+e); unpack_hi(a, 255, EQ+e)
            a(f"v_add_f32 v{T0}, v{T0}, v254"); a(f"v_add_f32 v{T1}, v{T1}, v255")
            a(f"v_cvt_pk_bf16_f32 v{XO+e}, v{T0}, v{T1}")
        a.vmem(f"buffer_store_dwordx4 v[{XO+4*pp}:{XO+4*pp+3}], v8, s[52:55], s26 offen offset:{1024*pp} {K1SC}", "so")
        a.vmem(f"buffer_store_dwordx4 v[{YO+4*pp}:{YO+4*pp+3}], v8, s[52:55], s25 offen offset:{1024*pp} {K1SC}", "so")
    stamp(a, 3, 219)
    stamp_flush(a, 1, 4, 219, 10)
    a("s_cmp_ge_u32 s2, 7")
    a("s_cbranch_scc1 K1_END")
    for s_ in range(1, 16): a(f"v_add_f32 v220, v220, v{220+s_}")
    a("v_lshlrev_b32 v16, 16, v16")
    a(f"s_mov_b32 s21, {WS_C1:#x}")
    a(f"s_mov_b32 s22, {WS_B1F:#x}")
    a.vmem("buffer_store_dword v220, v15, s[52:55], s21 offen", "c")
    a.vmem("buffer_store_dword v16, v15, s[52:55], s22 offen", "c")
    a.label("K1_END")
    a("s_endpgm")
    if PREFETCH:
        a.label("K1_HELP")
        a("s_and_b32 s30, s2, 7"); a("s_lshl_b32 s30, s30, 1"); a("s_lshr_b32 s31, s17, 4"); a("s_add_u32 s30, s30, s31")
        a("s_and_b32 s29, s17, 15")
        a("v_lshlrev_b32 v10, 4, v2")
        a("s_lshl_b32 s28, s30, 2"); a("s_add_u32 s28, s28, s19"); a("s_sub_u32 s28, s28, 4"); a("s_mul_i32 s28, s28, 114688")
        a("s_mul_i32 s21, s29, 7168"); a("s_add_u32 s28, s28, s21"); a(f"s_add_u32 s28, s28, {WS_H1:#x}")
        a("s_barrier")
        for n in range(7):
            a(f"buffer_load_dwordx4 v[{24+4*n}:{27+4*n}], v10, s[52:55], s28 offen offset:{1024*(n&3)}")
            if (n & 3) == 3: a("s_add_u32 s28, s28, 4096")
        a("s_lshl_b32 s28, s30, 10"); a(f"s_add_u32 s28, s28, {WS_FLAG:#x}")
        a("buffer_load_dwordx4 v[56:59], v10, s[52:55], s28 offen")
        a("s_barrier")
        if PREFETCH >= 2:
            a("s_mul_i32 s20, s29, 114688"); a("s_mul_i32 s21, s31, 57344"); a("s_add_u32 s20, s20, s21")
            a("s_sub_u32 s21, s19, 4"); a("s_mul_i32 s21, s21, 14336"); a("s_add_u32 s20, s20, s21"); a(f"s_add_u32 s20, s20, {WS_W1P:#x}")
            for n in range(14):
                a(f"buffer_load_dwordx4 v[{64+4*n}:{67+4*n}], v10, s[52:55], s20 offen offset:{1024*(n&3)}")
                if (n & 3) == 3: a("s_add_u32 s20, s20, 4096")
        a("s_waitcnt vmcnt(0)")
        a("s_endpgm")
    return a.text(), 256


FL_XT = 0x4000
L_RED = 114688
SPIN_MAX = 200000
STAMP_NAMES = ["start","w1","g1a","ep1a","flHa","polHa","g2a","polS","flX","polX","g1b","ep1b","flHb","polHb","g2b","out","end","red","stS","a1","a4","a8","a12","b1","b4","b8","b12"]

def poll(a, voff, soff):
    L = a.newlabel("POLL"); E = a.newlabel("POLLX")
    a(f"s_mov_b32 s40, {SPIN_MAX}")
    a.label(L)
    a(f"buffer_load_dword v14, {voff}, s[52:55], {soff} offen sc1")
    a("s_sub_u32 s40, s40, 1")
    a("s_cbranch_scc1 " + E)
    a("s_waitcnt vmcnt(0)"); a.vm = []
    a("v_cmp_eq_u32 vcc, 0, v14")
    a("s_cbranch_vccnz " + L)
    a.label(E)
    a("s_waitcnt vmcnt(0)")

def ln_scalars(a, mean, var, tmp):
    for m, v in zip(mean, var):
        round_bf16_pair(a, m, v, tmp)
        a(f"v_add_f32 v{v}, 0x3727c5ac, v{v}")
        a(f"v_cvt_pk_bf16_f32 v{tmp}, v{v}, v{v}")
        unpack_lo(a, v, tmp)
        a(f"v_sqrt_f32 v{v}, v{v}")
        a.nop(1)
        a(f"v_cvt_pk_bf16_f32 v{tmp}, v{v}, v{v}")
        unpack_lo(a, v, tmp)
        a(f"v_rcp_f32 v{v}, v{v}")
        a.nop(1)

def gen_k2():
    a = Asm()
    AF = 128
    ACC1 = 72
    WR = 16; NW = 9
    SUM, SS, ONES = 52, 60, 68
    XM, YT, B2, XT = 224, 232, 240, 248
    a("s_cmp_ge_u32 s2, 256")
    a("s_cbranch_scc1 K2_END")
    a.sload(f"s_load_dwordx4 s[4:7], s[0:1], {KA_B2}")
    a.sload(f"s_load_dwordx2 s[14:15], s[0:1], {KA_WS}")
    if STAMPS: a("v_mov_b32 v15, 0")
    a("s_getreg_b32 s42, hwreg(HW_REG_XCC_ID)")
    a("s_and_b32 s16, s2, 7")
    a("s_lshr_b32 s17, s2, 3")
    a("s_lshl_b32 s16, s16, 1")
    a("s_lshr_b32 s21, s17, 4")
    a("s_add_u32 s16, s16, s21")
    a("s_and_b32 s17, s17, 15")
    a("s_lshr_b32 s19, s17, 3")
    a("s_and_b32 s20, s17, 7")
    a("s_and_b32 s42, s42, 15")
    a("s_add_u32 s42, s42, 1")
    a("v_lshrrev_b32 v1, 6, v0")
    a("v_and_b32 v2, 63, v0")
    a("v_readfirstlane_b32 s18, v1")
    a("v_lshlrev_b32 v3, 4, v2")
    a("v_and_b32 v4, 15, v2")
    a("v_lshrrev_b32 v5, 4, v2")
    a("v_add_u32 v6, 57344, v3")
    a("s_lshr_b32 s22, s18, 1")
    a("s_and_b32 s23, s18, 1")
    a("v_and_b32 v7, 1, v5")
    a("v_lshlrev_b32 v7, 3, v7")
    a("v_and_b32 v8, 2, v5")
    a("v_add_u32 v7, v7, v8")
    a(f"v_mul_u32_u24 v7, {PS}, v7")
    a("v_lshl_add_u32 v7, v4, 3, v7")
    a("s_lshl_b32 s24, s16, 9")
    a("s_lshl_b32 s25, s18, 7")
    a("s_add_u32 s24, s24, s25")
    a("v_add_u32 v7, s24, v7")
    a(f"v_add_u32 v8, {PS}, v7")
    a("s_mul_i32 s24, s17, 114688")
    a(f"s_add_u32 s24, s24, {WS_W1P:#x}")
    a("s_lshl_b32 s25, s18, 12")
    a("s_add_u32 s24, s24, s25")
    a("v_cmp_eq_u32 vcc, 0, v2")
    a("v_mov_b32 v9, 0x7fffffff")
    a("s_lshl_b32 s41, s16, 10")
    a(f"s_add_u32 s41, s41, {WS_FLAG:#x}")
    a("v_cndmask_b32 v9, v9, 0, vcc")
    a.wait_lg0()
    stamp(a, 0)
    a.srd(52, 14, WS_SIZE)
    def a0_loads(s):
        F = AF + 8*s
        out = []
        out.append(lambda: a(f"s_mov_b32 s26, {WS_X1P + 16*s*PS:#x}"))
        out.append(lambda: a.vmem(f"buffer_load_dwordx2 v[{F}:{F+1}], v7, s[52:55], s26 offen", f"A{s}"))
        out.append(lambda: a.vmem(f"buffer_load_dwordx2 v[{F+4}:{F+5}], v8, s[52:55], s26 offen", f"A{s}"))
        out.append(lambda: a(f"s_mov_b32 s26, {WS_X1P + (16*s+4)*PS:#x}"))
        out.append(lambda: a.vmem(f"buffer_load_dwordx2 v[{F+2}:{F+3}], v7, s[52:55], s26 offen", f"A{s}"))
        out.append(lambda: a.vmem(f"buffer_load_dwordx2 v[{F+6}:{F+7}], v8, s[52:55], s26 offen", f"A{s}"))
        return out
    def a0_fix(s):
        F = AF + 8*s
        return [lambda: a.wait_vm(f"A{s}"), lambda: a(f"v_swap_b32 v{F+1}, v{F+4}"), lambda: a(f"v_swap_b32 v{F+3}, v{F+6}")]
    def w1_dma(i):
        a("s_mov_b32 m0, s25")
        a("s_nop 0")
        for c in range(4):
            a.vmem(f"buffer_load_dwordx4 v3, s[52:55], s24 offen offset:{1024*c} lds", f"w1_{i}")
        if i < 6:
            a("s_add_u32 s25, s25, 16384"); a("s_add_u32 s24, s24, 16384")
    LOOK = A0LOOK
    for k in range(max(LOOK, W1AHEAD + 1)):
        if k < LOOK:
            for f in a0_loads(k): f()
        if k <= W1AHEAD: w1_dma(k)
    a("s_lshl_b32 s26, s16, 4"); a("s_add_u32 s26, s26, s17"); a("s_lshl_b32 s26, s26, 2")
    a(f"s_add_u32 s26, s26, {WS_FLAG + FL_XT:#x}")
    a("v_mov_b32 v13, s42")
    a("v_cmp_eq_u32 vcc, 0, v0")
    a("v_mov_b32 v14, 0x7fffffff")
    a("s_nop 0")
    a("v_cndmask_b32 v14, v14, 0, vcc")
    a.vmem("buffer_store_dword v13, v14, s[52:55], s26 offen sc0 sc1", "xt")
    a.srd(56, 6, 0x200000)
    a.srd(60, 4, 1024)
    for d in range(4): a(f"v_mov_b32 v{ONES+d}, 0x3f803f80")
    a("v_and_b32 v10, 31, v2")
    a("v_lshrrev_b32 v12, 5, v2")
    a("v_bfe_u32 v11, v2, 4, 1")
    a("v_lshl_add_u32 v11, v4, 1, v11")
    a("s_lshl_b32 s27, s16, 7"); a("s_lshl_b32 s28, s19, 6"); a("s_add_u32 s27, s27, s28")
    a("s_lshl_b32 s28, s22, 5"); a("s_add_u32 s27, s27, s28")
    a("v_add_u32 v11, s27, v11")
    a("v_add_u32 v10, s27, v10")
    a("s_lshl_b32 s28, s20, 1"); a("s_add_u32 s28, s28, s23")
    own = []
    own.append(lambda: a(f"v_mul_u32_u24 v13, {2*PS}, v12"))
    own.append(lambda: a("v_lshl_add_u32 v13, v11, 2, v13"))
    own.append(lambda: a(f"s_mul_i32 s29, s28, {16*PS}"))
    for q in range(4):
        for d in range(2):
            off = (4*q + d) * PS
            own.append(lambda off=off: a(f"s_add_u32 s30, s29, {WS_X1P + off:#x}"))
            own.append(lambda q=q, d=d: a.vmem(f"buffer_load_dword a{XM+2*q+d}, v13, s[52:55], s30 offen", "own"))
            own.append(lambda off=off: a(f"s_add_u32 s30, s29, {WS_YP + off:#x}"))
            own.append(lambda q=q, d=d: a.vmem(f"buffer_load_dword a{YT+2*q+d}, v13, s[52:55], s30 offen", "own"))
    own.append(lambda: a("v_lshlrev_b32 v13, 3, v12"))
    own.append(lambda: a("s_lshl_b32 s30, s28, 6"))
    for q in range(4):
        own.append(lambda q=q: a.vmem(f"buffer_load_dwordx2 a[{B2+2*q}:{B2+2*q+1}], v13, s[60:63], s30 offen offset:{16*q}", "own"))
    w2l = []
    w2l.append(lambda: a("s_mul_i32 s43, s20, 229376"))
    w2l.append(lambda: a("s_mul_i32 s31, s18, 57344"))
    w2l.append(lambda: a("s_add_u32 s43, s43, s31"))
    w2l.append(lambda: a(f"s_add_u32 s43, s43, {WS_W2P:#x}"))
    w2l.append(lambda: a("s_lshl_b32 s31, s23, 10"))
    w2l.append(lambda: a("v_add_u32 v1, s31, v3"))
    w2l.append(lambda: a("v_xor_b32 v13, 1024, v1"))
    w2b = []
    for ks in range(28):
        L = w2l if ks < W2SPLIT else w2b
        for c in range(2):
            L.append(lambda ks=ks, c=c: a.vmem(f"buffer_load_dwordx4 a[{(2*ks+c)*4}:{(2*ks+c)*4+3}], {('v1','v13')[c]}, s[52:55], s43 offen offset:{2048*(ks&1)}", "w2"))
        if ks & 1: L.append(lambda: a("s_add_u32 s43, s43, 4096"))

    CB = AF
    SD1 = AF + 56
    def cb_loads():
        out = []
        out.append(lambda: a("v_lshlrev_b32 v7, 4, v5"))
        out.append(lambda: a("s_mul_i32 s26, s17, 448"))
        out.append(lambda: a(f"s_add_u32 s32, s26, {WS_C1:#x}"))
        out.append(lambda: a(f"s_add_u32 s33, s26, {WS_B1F:#x}"))
        for ft in range(7):
            out.append(lambda ft=ft: a.vmem(f"buffer_load_dwordx4 v[{CB+4*ft}:{CB+4*ft+3}], v7, s[52:55], s32 offen offset:{64*ft}", "cb"))
            out.append(lambda ft=ft: a.vmem(f"buffer_load_dwordx4 v[{CB+28+4*ft}:{CB+28+4*ft+3}], v7, s[52:55], s33 offen offset:{64*ft}", "cb"))
        return out

    def g1_main(layer, pre):
        seq = [(s, ft) for s in range(16) for ft in range(7)]
        def wread(n):
            if layer == 0 and n > 0 and n % 16 == 0:
                a.wait_vm(f"w1_{n//16}"); a("s_barrier")
                if n//16 + W1AHEAD < 7: w1_dma(n//16 + W1AHEAD)
            s, ft = seq[n]
            off = s*7168 + ft*1024
            base = "v3" if off < 57344 else "v6"
            if off >= 57344: off -= 57344
            r = WR + 4*(n % NW)
            a.lds(f"ds_read_b128 v[{r}:{r+3}], {base} offset:{off}", f"W{layer}_{n}")
        for n in range(NW - 1): wread(n)
        nm = 18 if layer == 0 else 14
        for s in range(16):
            if FINE and s in (1, 4, 8, 12): stamp(a, 19 + 4*layer + (1, 4, 8, 12).index(s))
            F = Fill()
            for f in pre[s]: F.add(f)
            nfill = (len(F.q) + nm - 3) // (nm - 2)
            for ft in range(7):
                n = s*7 + ft
                r = WR + 4*(n % NW)
                for rt in range(2):
                    if ft == 0 and layer == 1: a.wait_vm(f"A{s}_{rt}")
                    if rt == 0: a.wait_lg(f"W{layer}_{n}")
                    C = ACC1 + 8*ft + 4*rt; B = AF + 8*s + 4*rt
                    src = "0" if s == 0 else f"v[{C}:{C+3}]"
                    a(f"v_mfma_f32_16x16x32_bf16 v[{C}:{C+3}], v[{r}:{r+3}], v[{B}:{B+3}], {src}")
                    if rt == 0 and n + NW - 1 < len(seq): wread(n + NW - 1)
                    F.emit(nfill)
            if layer == 0:
                F.flush()
                for rt in range(2):
                    B = AF + 8*s + 4*rt
                    for (C, A) in ((SUM + 4*rt, ONES), (SS + 4*rt, B)):
                        src = "0" if s == 0 else f"v[{C}:{C+3}]"
                        a(f"v_mfma_f32_16x16x32_bf16 v[{C}:{C+3}], v[{A}:{A+3}], v[{B}:{B+3}], {src}")
            F.flush()
        stamp(a, 2 + 8*layer)

    def g1_stats0():
        a("v_lshrrev_b32 v16, 2, v4")
        a("v_cmp_eq_u32 s[34:35], v16, v5")
        a("v_and_b32 v16, 3, v4")
        a("v_cmp_eq_u32 s[36:37], 1, v16")
        a("v_cmp_eq_u32 s[38:39], 2, v16")
        a("v_cmp_eq_u32 vcc, 3, v16")
        a.nop(4)
        for rt in range(2):
            S = SS + 4*rt; d = 18 + rt
            a(f"v_cndmask_b32 v{d}, v{S}, v{S+1}, s[36:37]")
            a(f"v_cndmask_b32 v{d}, v{d}, v{S+2}, s[38:39]")
            a(f"v_cndmask_b32 v{d}, v{d}, v{S+3}, vcc")
            a(f"v_cndmask_b32 v{d}, 0, v{d}, s[34:35]")
        quad_sum(a, [18, 19], [20, 21])
        for rt in range(2):
            a(f"v_mul_f32 v{22+rt}, 0x3b000000, v{SUM+4*rt}")
            a(f"v_mul_f32 v{18+rt}, 0x3b000000, v{18+rt}")
            a(f"v_fma_f32 v{18+rt}, -v{22+rt}, v{22+rt}, v{18+rt}")
            a(f"v_max_f32 v{18+rt}, 0, v{18+rt}")
        ln_scalars(a, [22, 23], [18, 19], 20)

    def stats1_fill():
        b = Asm()
        for rt in range(2):
            S = SD1 + 8*rt
            b(f"v_add_f32 v{52+rt}, v{S}, v{S+2}"); b(f"v_add_f32 v{56+rt}, v{S+4}, v{S+6}"); b(f"v_add_f32 v{52+rt}, v{52+rt}, v{56+rt}")
        quad_sum(b, [52, 53], [56, 57])
        for rt in range(2):
            S = SD1 + 8*rt
            b(f"v_mul_f32 v{52+rt}, 0x3d800000, v{52+rt}")
            b(f"v_add_f32 v{54+rt}, v{S+1}, v{S+3}"); b(f"v_add_f32 v{56+rt}, v{S+5}, v{S+7}"); b(f"v_add_f32 v{54+rt}, v{54+rt}, v{56+rt}")
            b(f"v_mul_f32 v{54+rt}, 0x3d000000, v{54+rt}")
            for k in range(4):
                b(f"v_sub_f32 v{56+rt}, v{S+2*k}, v{52+rt}"); b(f"v_fmac_f32 v{54+rt}, v{56+rt}, v{56+rt}")
        quad_sum(b, [54, 55], [56, 57])
        for rt in range(2): b(f"v_mul_f32 v{54+rt}, 0x3d800000, v{54+rt}")
        ln_scalars(b, [52, 53], [54, 55], 56)
        return [lambda: a.wait_vm("sd1")] + [(lambda l=l: a.raw(l)) for l in b.lines]

    def issue_vm(lst, n):
        while lst and n > 0:
            before = len(a.vm); lst.pop(0)()
            if len(a.vm) > before: n -= 1
    def g1_epi(layer, SC, M, R, after_stores):
        a("v_lshlrev_b32 v24, 9, v5")
        a("v_lshl_add_u32 v24, v4, 4, v24")
        a("v_lshrrev_b32 v25, 1, v5")
        a("v_lshlrev_b32 v25, 9, v25")
        a("v_lshl_add_u32 v25, v4, 4, v25")
        a("v_and_b32 v26, 1, v5")
        a("v_lshl_add_u32 v25, v26, 3, v25")
        a("s_lshl_b32 s26, s16, 2"); a("s_add_u32 s26, s26, s18")
        a("s_mul_i32 s26, s26, 114688")
        a("s_mul_i32 s32, s17, 7168")
        a("s_add_u32 s26, s26, s32")
        a(f"s_add_u32 s26, s26, {WS_H1:#x}")
        a("s_add_u32 s32, s26, 4096")
        a.wait_vm("cb")
        O = 28; oi = 0
        for p in range(4):
            for rt in range(2):
                o = O + 4*(oi % 6); oi += 1
                for h in range(2 if p < 3 else 1):
                    ft = 2*p + h
                    C = ACC1 + 8*ft + 4*rt
                    for i in range(4): a(f"v_fma_f32 v{C+i}, -v{M+rt}, v{CB+4*ft+i}, v{C+i}")
                    for i in range(4): a(f"v_fma_f32 v{C+i}, v{C+i}, v{R+rt}, v{CB+28+4*ft+i}")
                    for i in range(4): a(f"v_max_f32 v{C+i}, 0, v{C+i}")
                    for i in range(4): a(f"v_mul_f32 v{C+i}, v{C+i}, v{C+i}")
                    a(f"v_cvt_pk_bf16_f32 v{o+2*h}, v{C}, v{C+1}")
                    a(f"v_cvt_pk_bf16_f32 v{o+2*h+1}, v{C+2}, v{C+3}")
                    issue_vm(after_stores, 1)
                if p < 2:
                    a.vmem(f"buffer_store_dwordx4 v[{o}:{o+3}], v24, s[52:55], s26 offen offset:{2048*p+256*rt} {SC}", "hs")
                elif p == 2:
                    a.vmem(f"buffer_store_dwordx4 v[{o}:{o+3}], v24, s[52:55], s32 offen offset:{256*rt} {SC}", "hs")
                else:
                    a.vmem(f"buffer_store_dwordx2 v[{o}:{o+1}], v25, s[52:55], s32 offen offset:{2048+256*rt} {SC}", "hs")
        stamp(a, 3 + 8*layer)
        issue_vm(after_stores, 4)
        a("v_mov_b32 v17, 1")
        a("s_lshl_b32 s26, s22, 4"); a("s_add_u32 s26, s26, s17")
        a("s_lshl_b32 s26, s26, 1"); a("s_add_u32 s26, s26, s23"); a("s_lshl_b32 s26, s26, 2")
        a("s_add_u32 s26, s26, s41")
        a.wait_vm("hs")
        a.vmem(f"buffer_store_dword v17, v9, s[52:55], s26 offen offset:{256*layer} {SC}", "fl")
        stamp(a, 4 + 8*layer)
        for f in after_stores: f()

    def half_sum(r, t):
        a(f"v_mov_b32 v{t}, v{r}"); a.nop(2)
        a(f"v_permlane32_swap_b32 v{r}, v{t}"); a.nop(1)
        a(f"v_add_f32 v{r}, v{r}, v{t}")
    def block_stats(X, o):
        a(f"v_add_f32 v{o}, v{X}, v{X+1}"); a(f"v_add_f32 v{o+2}, v{X+2}, v{X+3}")
        for i in range(4, 16, 2):
            a(f"v_add_f32 v{o}, v{o}, v{X+i}"); a(f"v_add_f32 v{o+2}, v{o+2}, v{X+i+1}")
        a(f"v_add_f32 v{o}, v{o}, v{o+2}")
        half_sum(o, o+2)
        a(f"v_mul_f32 v{o}, 0x3d000000, v{o}")
        for i in range(16):
            t = o + 2 + (i & 1)
            a(f"v_sub_f32 v{t}, v{X+i}, v{o}")
            if i == 0: a(f"v_mul_f32 v{o+1}, v{t}, v{t}")
            else: a(f"v_fmac_f32 v{o+1}, v{t}, v{t}")
        half_sum(o+1, o+2)

    def g2(layer, SC):
        ACC2 = 64
        slots = [128 + 4*i for i in range(32)] + [16 + 4*i for i in range(12)]
        NS = len(slots)
        a("v_and_b32 v13, 7, v2"); a("v_lshlrev_b32 v13, 2, v13")
        a("s_lshl_b32 s26, s19, 2"); a("s_add_u32 s26, s26, s18"); a("s_lshl_b32 s26, s26, 5")
        a("s_add_u32 s26, s26, s41")
        if layer: a("s_add_u32 s26, s26, 256")
        a("s_lshl_b32 s32, s16, 1"); a("s_add_u32 s32, s32, s19"); a("s_mul_i32 s32, s32, 229376")
        a("s_mul_i32 s33, s18, 28672"); a("s_add_u32 s32, s32, s33")
        a(f"s_add_u32 s32, s32, {WS_H1:#x}")
        a("s_mul_i32 s33, s22, 114688")
        a("v_add_u32 v7, s33, v3")
        a("s_sub_u32 s33, 114688, s33")
        a("v_add_u32 v8, s33, v3")
        poll(a, "v13", "s26")
        stamp(a, 5 + 8*layer)
        loads = []
        for ks in range(28):
            for t in range(2):
                n = 2*ks + t; r = slots[n % NS]
                loads.append(lambda ks=ks, t=t, r=r, n=n: a.vmem(f"buffer_load_dwordx4 v[{r}:{r+3}], v{7+t}, s[52:55], s32 offen offset:{1024*(ks&3)} sc1", f"H{n}"))
            if (ks & 3) == 3: loads.append(lambda: a("s_add_u32 s32, s32, 4096"))
        def issue1():
            while loads:
                before = len(a.vm); loads.pop(0)()
                if len(a.vm) > before: break
        for _ in range(G2LOOK): issue1()
        for ks in range(28):
            for t in range(2):
                n = 2*ks + t; r = slots[n % NS]
                a.wait_vm(f"H{n}")
                for c in range(2):
                    C = ACC2 + 16*(2*t + c); W = (2*ks + c)*4
                    src = "0" if ks == 0 else f"v[{C}:{C+15}]"
                    a(f"v_mfma_f32_32x32x16_bf16 v[{C}:{C+15}], a[{W}:{W+3}], v[{r}:{r+3}], {src}")
                issue1()
                if ks == 24 and t == 0:
                    pass
        stamp(a, 6 + 8*layer)
        for k in range(1, 4):
            a(f"s_xor_b32 s26, s18, {k}")
            a("s_mul_i32 s26, s26, 12288")
            a(f"s_add_u32 s26, s26, {L_RED + (k-1)*4096}")
            a(f"v_add_u32 v{16+k}, s26, v3")
        a("s_mul_i32 s26, s18, 12288")
        a(f"s_add_u32 s26, s26, {L_RED}")
        a("v_add_u32 v16, s26, v3")
        for k in range(1, 4):
            for r4 in range(4):
                C = ACC2 + 16*k + 4*r4
                a.lds(f"ds_write_b128 v{16+k}, v[{C}:{C+3}] offset:{1024*r4}", "rw")
        XF, BF = 128, 144
        for d in range(8):
            a(f"v_accvgpr_read_b32 v20, a{XM+d}")
            a(f"v_accvgpr_read_b32 v21, a{B2+d}")
            unpack_lo(a, XF+2*d, 20); unpack_hi(a, XF+2*d+1, 20)
            unpack_lo(a, BF+2*d, 21); unpack_hi(a, BF+2*d+1, 21)
        a.wait_lg0()
        a("s_barrier")
        RD = 160
        for k in range(3):
            for r4 in range(4):
                r = RD + 16*k + 4*r4
                a.lds(f"ds_read_b128 v[{r}:{r+3}], v16 offset:{4096*k+1024*r4}", f"rr{k}")
        for k in range(3):
            a.wait_lg(f"rr{k}")
            for i in range(16): a(f"v_add_f32 v{ACC2+i}, v{ACC2+i}, v{RD+16*k+i}")
        if layer == 0: stamp(a, 17)
        P = 24
        for d in range(8):
            x, y = ACC2+2*d, ACC2+2*d+1
            round_bf16_pair(a, x, y, 20)
            a(f"v_add_f32 v{x}, v{x}, v{BF+2*d}"); a(f"v_add_f32 v{y}, v{y}, v{BF+2*d+1}")
            round_bf16_pair(a, x, y, 20)
            a(f"v_add_f32 v{x}, v{x}, v{XF+2*d}"); a(f"v_add_f32 v{y}, v{y}, v{XF+2*d+1}")
            a(f"v_cvt_pk_bf16_f32 v{P+d}, v{x}, v{y}")
        if layer == 1:
            a("v_lshlrev_b32 v13, 10, v11")
            a("v_lshl_add_u32 v13, v12, 3, v13")
            a("s_lshl_b32 s26, s28, 6")
            for q in range(4):
                a.vmem(f"buffer_store_dwordx2 v[{P+2*q}:{P+2*q+1}], v13, s[56:59], s26 offen offset:{16*q}", "out")
            stamp(a, 15)
            return
        X2 = ACC2
        for d in range(8):
            unpack_lo(a, X2+2*d, P+d); unpack_hi(a, X2+2*d+1, P+d)
        block_stats(X2, 32)
        a("v_lshlrev_b32 v38, 3, v10")
        a("v_mov_b32 v36, 0x7fffffff")
        a("v_cmp_eq_u32 vcc, 0, v12")
        a(f"s_mul_i32 s31, s28, {STS}")
        a(f"s_add_u32 s26, s31, {WS_ST:#x}")
        a("v_cndmask_b32 v36, v36, v38, vcc")
        a.vmem(f"buffer_store_dwordx2 v[32:33], v36, s[52:55], s26 offen {SC}", "st")
        a("s_lshl_b32 s32, s19, 1"); a("s_add_u32 s32, s32, s22"); a("s_lshl_b32 s32, s32, 6")
        a("s_add_u32 s32, s32, s41"); a("s_add_u32 s32, s32, 512")
        a("s_lshl_b32 s33, s28, 2"); a("s_add_u32 s33, s33, s32")
        a("v_mov_b32 v17, 1")
        a("v_lshlrev_b32 v13, 2, v4")
        a(f"v_mul_u32_u24 v37, {8*STS}, v12")
        a("v_add_u32 v38, v37, v38")
        YF = 144
        for d in range(8):
            a(f"v_accvgpr_read_b32 v20, a{YT+d}")
            unpack_lo(a, YF+2*d, 20); unpack_hi(a, YF+2*d+1, 20)
        a.wait_vm0()
        a.vmem(f"buffer_store_dword v17, v9, s[52:55], s33 offen {SC}", "fl")
        stamp(a, 18)
        poll(a, "v13", "s32")
        stamp(a, 7)
        SD = 128
        for b in range(8):
            a(f"s_mov_b32 s26, {WS_ST + b*STS:#x}")
            a.vmem(f"buffer_load_dwordx2 v[{SD+2*b}:{SD+2*b+1}], v38, s[52:55], s26 offen sc1", "sd")
        a("v_lshrrev_b32 v35, 4, v10"); a("v_lshlrev_b32 v35, 14, v35")
        a("v_lshl_add_u32 v35, v12, 9, v35")
        a("v_lshl_add_u32 v35, v4, 4, v35")
        a("s_lshl_b32 s26, s28, 10")
        a(f"s_add_u32 s26, s26, {WS_X3U:#x}")
        a.wait_vm("sd")
        a(f"v_add_f32 v32, v{SD}, v{SD+2}"); a(f"v_add_f32 v33, v{SD+1}, v{SD+3}")
        for b in range(2, 8):
            a(f"v_add_f32 v32, v32, v{SD+2*b}"); a(f"v_add_f32 v33, v33, v{SD+2*b+1}")
        half_sum(32, 34)
        a("v_mul_f32 v32, 0x3d800000, v32")
        a("v_mul_f32 v33, 0x3d000000, v33")
        for b in range(8):
            a(f"v_sub_f32 v34, v{SD+2*b}, v32")
            a("v_fmac_f32 v33, v34, v34")
        half_sum(33, 34)
        a("v_mul_f32 v33, 0x3d800000, v33")
        ln_scalars(a, [32], [33], 34)
        for d in range(8):
            x, y = X2+2*d, X2+2*d+1
            a(f"v_sub_f32 v20, v{x}, v32"); a(f"v_sub_f32 v21, v{y}, v32")
            round_bf16_pair(a, 20, 21, 22)
            a("v_mul_f32 v20, v20, v33"); a("v_mul_f32 v21, v21, v33")
            round_bf16_pair(a, 20, 21, 22)
            a(f"v_mul_f32 v20, v20, v{YF+2*d}"); a(f"v_mul_f32 v21, v21, v{YF+2*d+1}")
            round_bf16_pair(a, 20, 21, 22)
            a(f"v_add_f32 v20, v20, v{x}"); a(f"v_add_f32 v21, v21, v{y}")
            a(f"v_cvt_pk_bf16_f32 v{P+d}, v20, v21")
            if d == 3: a.vmem(f"buffer_store_dwordx4 v[{P}:{P+3}], v35, s[52:55], s26 offen {SC}", "xs")
        a.vmem(f"buffer_store_dwordx4 v[{P+4}:{P+7}], v35, s[52:55], s26 offen offset:256 {SC}", "xs")
        for d in range(8):
            unpack_lo(a, X2+2*d, P+d); unpack_hi(a, X2+2*d+1, P+d)
        block_stats(X2, 32)
        a(f"s_add_u32 s26, s31, {WS_ST2:#x}")
        a.vmem(f"buffer_store_dwordx2 v[32:33], v36, s[52:55], s26 offen {SC}", "xs")
        for d in range(8): a(f"v_accvgpr_write_b32 a{XM+d}, v{P+d}")
        a.wait_vm0()
        a.vmem(f"buffer_store_dword v17, v9, s[52:55], s33 offen offset:256 {SC}", "fl")
        stamp(a, 8)

    pre = [[] for _ in range(16)]
    for s in range(16):
        if s + LOOK < 16: pre[s] += a0_loads(s + LOOK)
        if s + 1 < 16: pre[s] += a0_fix(s + 1)
    lat = own + w2l
    if NOLATE: w2b[:0] = lat; lat = []
    ks_late = list(range(13, 16))
    per = max(1, (len(lat) + len(ks_late) - 1) // len(ks_late))
    for i, s in enumerate(ks_late): pre[s] = lat[per*i: per*(i+1)] + pre[s]
    pre[13] = cb_loads() + pre[13]
    pre[13] = [lambda: a("v_lshlrev_b32 v14, 2, v4"), lambda: a("s_lshl_b32 s44, s16, 6"), lambda: a(f"s_add_u32 s44, s44, {WS_FLAG + FL_XT:#x}"),
               lambda: a.vmem(f"buffer_load_dword a{XT}, v14, s[52:55], s44 offen sc1", "xtl")] + pre[13]
    for f in a0_fix(0): f()
    a.wait_vm("w1_0")
    a("s_barrier")
    stamp(a, 1)
    g1_main(0, pre)
    g1_stats0()
    a.wait_vm("xtl")
    a(f"v_accvgpr_read_b32 v14, a{XT}")
    a("v_lshlrev_b32 v16, 2, v4")
    a("v_cmp_eq_u32 vcc, 0, v14")
    a("s_cbranch_vccz K2_XT_OK")
    save_vm = list(a.vm)
    poll(a, "v16", "s44")
    a.vm = save_vm
    a.label("K2_XT_OK")
    a("v_cmp_ne_u32 vcc, s42, v14")
    if FORCE_SLOW: a("s_branch K2_SLOW")
    a("s_cbranch_vccnz K2_SLOW")
    state = (list(a.vm), list(a.lg))
    w2b_copy = list(w2b)
    for mode in ("FAST", "SLOW"):
        SC = "" if mode == "FAST" else "sc0 sc1"
        if mode == "SLOW":
            a.label("K2_SLOW")
            a.vm, a.lg = list(state[0]), list(state[1])
        g1_epi(0, SC, 22, 18, list(w2b_copy))
        g2(0, SC)
        a("s_lshl_b32 s26, s18, 6"); a("s_add_u32 s26, s26, s41"); a("s_add_u32 s26, s26, 768")
        a("s_lshl_b32 s32, s16, 2"); a("s_add_u32 s32, s32, s18"); a("s_lshl_b32 s33, s32, 8"); a("s_lshl_b32 s32, s32, 15")
        a(f"s_add_u32 s32, s32, {WS_X3U:#x}")
        a("v_add_u32 v7, 16384, v3")
        a(f"v_mul_u32_u24 v8, {4*STS}, v5")
        a("v_lshl_add_u32 v8, v4, 3, v8")
        a(f"s_add_u32 s33, s33, {WS_ST2:#x}")
        poll(a, "v13", "s26")
        stamp(a, 9)
        al = []
        for s in range(16):
            for rt in range(2):
                r = AF + 8*s + 4*rt
                grp_ = [lambda r=r, rt=rt, s=s: a.vmem(f"buffer_load_dwordx4 v[{r}:{r+3}], {('v3','v7')[rt]}, s[52:55], s32 offen offset:{1024*(s&3)} sc1", f"A{s}_{rt}")]
                if (s & 3) == 3 and rt == 1: grp_.append(lambda: a("s_add_u32 s32, s32, 4096"))
                al.append(grp_)
        for g_ in al[:G1LOOK]:
            for f in g_: f()
        al = al[G1LOOK:]
        pre = [[] for _ in range(16)]
        for s in range(16):
            for g_ in al[3*s:3*s+3]: pre[s] += g_
        sl = []
        for k in range(4):
            for rt in range(2):
                r = SD1 + 8*rt + 2*k
                sl.append(lambda r=r, rt=rt: a.vmem(f"buffer_load_dwordx2 v[{r}:{r+1}], v8, s[52:55], s33 offen offset:{128*rt} sc1", "sd1"))
            sl.append(lambda: a(f"s_add_u32 s33, s33, {STS}"))
        pre[9] += sl
        pre[10] += cb_loads()
        sf = stats1_fill()
        per = (len(sf) + 3) // 4
        for i in range(4): pre[12+i] = sf[per*i: per*(i+1)]
        g1_main(1, pre)
        a.nop(4)
        g1_epi(1, SC, 52, 54, [])
        g2(1, SC)
        stamp_flush2(a)
        a("s_endpgm")
    a.label("K2_END")
    a("s_endpgm")
    return a.text()

def stamp_flush2(a):
    if not STAMPS: return
    a.wait_vm0()
    stamp(a, 16)
    a("v_lshlrev_b32 v13, 2, v2")
    a("s_lshl_b32 s70, s2, 2"); a("s_add_u32 s70, s70, s18"); a("s_lshl_b32 s70, s70, 8")
    a(f"s_add_u32 s70, s70, {WS_STAMP + 2*0x40000:#x}")
    a("buffer_store_dword v15, v13, s[52:55], s70 offen")

def build(kernels, path):
    out = []
    for (label, text, vgpr, accum, lds, block) in kernels:
        out.append(f"; @launch kernel={label} grid=(256,1,1) block=({block},1,1) lds={lds}")
    out.append('.amdgcn_target "amdgcn-amd-amdhsa--gfx950"')
    out.append(".text")
    seen = set()
    for (label, text, vgpr, accum, lds, block) in kernels:
        if label in seen: continue
        seen.add(label)
        out.append(kernel_header(label) + text)
    out.append('.section .rodata,"a"')
    seen = set()
    for (label, text, vgpr, accum, lds, block) in kernels:
        if label in seen: continue
        seen.add(label)
        out.append(".p2align 6")
        out.append(kernel_desc(label, vgpr, accum))
    open(path, "w").write("\n".join(out) + "\n")

if __name__ == "__main__":
    path = sys.argv[1] if len(sys.argv) > 1 else f"cdna_kernels/{NAME}.s"
    ks = []
    t, v = gen_k0(); ks.append(("k0_kernel", t, v, v, 0, 256))
    t, v = gen_k1(); ks.append(("k1_kernel", t, v, 256, K1_LDS, 512 if PREFETCH else 256))
    if "gen_k2" in globals():
        t = gen_k2(); ks.append(("k2_kernel", t, 512, 256, 163840, 256))
    nempty = int(os.environ.get("NEMPTY", "0"))
    for i in range(nempty): ks.append(("e_kernel", "    s_endpgm\n", 8, 8, 0, 256))
    build(ks, path)
```

```python
import os
from asmlib import *
NAME = "interleave_layers__ssm_conv_h3__dense_activation_squared_relu__prompt"
KA_Q, KA_K, KA_V, KA_SK, KA_H, KA_D, KA_BX, KA_W1, KA_B1, KA_W2, KA_B2, KA_OUT, KA_DBG, KA_WS = [8*i for i in range(14)]
def env(n, d): return int(os.environ.get(n, str(d)))
PS = 8192
STS = 16384
WS_UP, WS_QP, WS_YP, WS_X1P = 0x000000, 0x200000, 0x400000, 0x600000
WS_X3U  = WS_UP
WS_QST  = 0x800000
WS_FLAG = 0x808000
FLAG_BYTES = 0x6000
WS_C1P  = 0x810000
WS_RS   = 0x830000
WS_ST   = 0x880000
WS_ST2  = 0x8c0000
WS_W1P  = 0x900000
WS_W2P  = 0xB00000
WS_STAMP = 0xF00000
WS_H1   = 0x1000000
WS_SIZE = 0x2000000
MASKHI = "0xffff0000"
OOB = "0x7fffffff"
STAMPS = env("STAMPS", 0)
FL_GF, FL_LF, FL_XT = 768, 0x4000, 0x5000
SPIN_MAX = 200000

def stamp(a, idx, reg=15):
    if not STAMPS: return
    a("s_memrealtime s[70:71]")
    a("s_memtime s[72:73]")
    a("s_waitcnt lgkmcnt(0)"); a.lg = []; a.smem = False
    a(f"v_writelane_b32 {reg if isinstance(reg,str) else 'v%d'%reg}, s70, {idx}")
    a(f"v_writelane_b32 {reg if isinstance(reg,str) else 'v%d'%reg}, s72, {idx+32}")
def stamp_flush(a, kidx, idx, reg, lane, t1, swave):
    if not STAMPS: return
    a.wait_vm0()
    stamp(a, idx, reg)
    a(f"v_lshlrev_b32 v{t1}, 2, v{lane}")
    a(f"s_lshl_b32 s70, s2, 2"); a(f"s_add_u32 s70, s70, {swave}"); a("s_lshl_b32 s70, s70, 8")
    a(f"s_add_u32 s70, s70, {WS_STAMP + kidx*0x40000:#x}")
    a(f"buffer_store_dword v{reg}, v{t1}, s[52:55], s70 offen")
def unpack_lo(a, d, s): a(f"v_lshlrev_b32 v{d}, 16, v{s}")
def unpack_hi(a, d, s): a(f"v_and_b32 v{d}, {MASKHI}, v{s}")
def quad_sum(a, regs, tmps):
    for op in ("v_permlane16_swap_b32", "v_permlane32_swap_b32"):
        for r, t in zip(regs, tmps): a(f"v_mov_b32 v{t}, v{r}")
        a.nop(max(0, 3 - len(regs)) if len(regs) < 3 else 0)
        if len(regs) >= 3: a.nop(2)
        for r, t in zip(regs, tmps): a(f"{op} v{r}, v{t}")
        a.nop(1)
        for r, t in zip(regs, tmps): a(f"v_add_f32 v{r}, v{r}, v{t}")
def half_sum(a, regs, tmps):
    for r, t in zip(regs, tmps): a(f"v_mov_b32 v{t}, v{r}")
    a.nop(2)
    for r, t in zip(regs, tmps): a(f"v_permlane32_swap_b32 v{r}, v{t}")
    a.nop(1)
    for r, t in zip(regs, tmps): a(f"v_add_f32 v{r}, v{r}, v{t}")
def wave_sum(a, regs, tmps):
    n = len(regs)
    for sh in (8, 4, 2, 1):
        if n < 3: a.nop(3 - n)
        for r in regs: a(f"v_add_f32_dpp v{r}, v{r}, v{r} row_ror:{sh} row_mask:0xf bank_mask:0xf")
    quad_sum(a, regs, tmps)
def round_bf16_pair(a, x, y, t):
    a(f"v_cvt_pk_bf16_f32 v{t}, v{x}, v{y}")
    unpack_lo(a, x, t); unpack_hi(a, y, t)
def pk(r): return f"v[{r}:{r+1}]"

class Fill:
    def __init__(self): self.q = []
    def add(self, f): self.q.append(f)
    def ext(self, l): self.q.extend(l)
    def ins(self, a, s): self.q.append(lambda: a(s))
    def emit(self, n=1):
        for _ in range(n):
            if self.q: self.q.pop(0)()
    def flush(self):
        while self.q: self.q.pop(0)()
def thunks(a, fn):
    b = Asm(); fn(b)
    assert not b.vm and not b.lg
    return [(lambda l=l: a.raw(l)) for l in b.lines]
def w1chunk(s, ft):
    return 4*s + ft if ft < 4 else (64 + 2*s + ft - 4 if ft < 6 else 96 + s)
```

```python
from g2common import *
SC1 = "sc0 sc1"
K0SC = os.environ.get("K0SC", SC1)

def gen_k0():
    a = Asm()
    a("s_cmp_ge_u32 s2, 256")
    a("s_cbranch_scc1 K0_END")
    a.sload(f"s_load_dwordx4 s[4:7], s[0:1], {KA_Q}")
    a.sload(f"s_load_dwordx4 s[8:11], s[0:1], {KA_V}")
    a.sload(f"s_load_dwordx2 s[12:13], s[0:1], {KA_W1}")
    a.sload(f"s_load_dwordx2 s[14:15], s[0:1], {KA_WS}")
    a.sload(f"s_load_dwordx2 s[60:61], s[0:1], {KA_W2}")
    a("v_lshrrev_b32 v1, 6, v0")
    a("v_and_b32 v2, 63, v0")
    a("s_and_b32 s16, s2, 7")
    a("v_readfirstlane_b32 s18, v1")
    a("s_lshr_b32 s17, s2, 3")
    a(f"v_mov_b32 v14, {OOB}")
    if STAMPS: a("v_mov_b32 v15, 0")
    a("s_cmp_ge_u32 s18, 4")
    a("s_cbranch_scc1 K0_AUX")
    a("v_and_b32 v3, 7, v2")
    a("v_lshrrev_b32 v4, 3, v2")
    a("s_lshr_b32 s19, s18, 1")
    a("s_and_b32 s20, s18, 1")
    a("s_lshl_b32 s21, s17, 1"); a("s_add_u32 s21, s21, s19"); a("s_lshl_b32 s21, s21, 5")
    a("s_lshl_b32 s22, s16, 1"); a("s_add_u32 s22, s22, s20")
    a("v_lshlrev_b32 v5, 12, v3")
    a("v_lshl_add_u32 v5, v4, 3, v5")
    a("s_lshl_b32 s23, s21, 10"); a("s_lshl_b32 s24, s22, 6"); a("s_add_u32 s23, s23, s24")
    a("v_add_u32 v5, s23, v5")
    a("v_subrev_u32 v6, 0xc00, v5")
    a("v_lshlrev_b32 v7, 5, v4")
    a("s_lshl_b32 s24, s22, 8")
    a(f"v_mul_u32_u24 v8, {2*PS}, v4")
    a("v_lshl_add_u32 v8, v3, 4, v8")
    a(f"s_mul_i32 s25, s22, {16*PS}"); a("s_lshl_b32 s26, s21, 2"); a("s_add_u32 s25, s25, s26")
    a("v_add_u32 v8, s25, v8")
    a(f"v_add_u32 v9, {PS}, v8")
    a.wait_lg0()
    stamp(a, 0)
    a.srd(36, 6, 0x200000)
    a.srd(40, 8, 0x200000)
    a.srd(44, 10, 4096)
    K, V, Q, SK = 16, 32, 40, 48
    def ro(r): return ("v6", (r+3)*1024) if r < 0 else ("v5", r*1024)
    for r in range(-3, 4):
        vo, off = ro(r)
        a.vmem(f"buffer_load_dwordx2 {pk(K+2*(r+3))}, {vo}, s[36:39], 0 offen offset:{off}", f"k{r}")
        if r >= 0: a.vmem(f"buffer_load_dwordx2 {pk(V+2*r)}, {vo}, s[40:43], 0 offen offset:{off}", f"v{r}")
        if r == -3:
            a.vmem(f"buffer_load_dwordx4 v[{SK}:{SK+3}], v7, s[44:47], s24 offen", "sk")
            a.vmem(f"buffer_load_dwordx4 v[{SK+4}:{SK+7}], v7, s[44:47], s24 offen offset:16", "sk")
    a.srd(32, 4, 0x200000)
    a.srd(52, 14, WS_SIZE)
    for r, d in enumerate((0, 4, 2, 6)):
        a.vmem(f"buffer_load_dwordx2 {pk(Q+d)}, v5, s[32:35], 0 offen offset:{r*1024}", "q")
    C = 56
    a.wait_vm("sk")
    for pi in range(2):
        for tap in range(4):
            f = unpack_lo if tap % 2 == 0 else unpack_hi
            f(a, C + 8*pi + 2*tap, SK + 4*pi + tap//2)
            f(a, C + 8*pi + 2*tap + 1, SK + 4*pi + 2 + tap//2)
    KF = 72
    def kf(r, pi): return KF + 4*(r+3) + 2*pi
    U = 100
    T0, T1 = 108, 112
    for r in range(-3, 4):
        a.wait_vm(f"k{r}")
        for pi in range(2):
            unpack_lo(a, kf(r, pi), K+2*(r+3)+pi); unpack_hi(a, kf(r, pi)+1, K+2*(r+3)+pi)
        if r < 0: continue
        for pi in range(2): a(f"v_pk_mul_f32 {pk(T0+2*pi)}, {pk(kf(r-3,pi))}, {pk(C+8*pi+6)}")
        for tap in (2, 1, 0):
            for pi in range(2): a(f"v_pk_fma_f32 {pk(T0+2*pi)}, {pk(kf(r-tap,pi))}, {pk(C+8*pi+2*tap)}, {pk(T0+2*pi)}")
        a.wait_vm(f"v{r}")
        for pi in range(2):
            unpack_lo(a, T1+2*pi, V+2*r+pi); unpack_hi(a, T1+2*pi+1, V+2*r+pi)
        for pi in range(2): a(f"v_pk_mul_f32 {pk(T0+2*pi)}, {pk(T0+2*pi)}, {pk(T1+2*pi)}")
        for pi in range(2): a(f"v_cvt_pk_bf16_f32 v{U+4*pi+r}, v{T0+2*pi}, v{T0+2*pi+1}")
    a.vmem(f"buffer_store_dwordx4 v[{U}:{U+3}], v8, s[52:55], 0 offen {K0SC}", "s")
    a.vmem(f"buffer_store_dwordx4 v[{U+4}:{U+7}], v9, s[52:55], 0 offen {K0SC}", "s")
    stamp(a, 1)
    a(f"s_mov_b32 s19, {WS_QP:#x}")
    a.wait_vm("q")
    a(f"v_swap_b32 v{Q+1}, v{Q+4}"); a(f"v_swap_b32 v{Q+3}, v{Q+6}")
    a.vmem(f"buffer_store_dwordx4 v[{Q}:{Q+3}], v8, s[52:55], s19 offen {K0SC}", "s")
    a.vmem(f"buffer_store_dwordx4 v[{Q+4}:{Q+7}], v9, s[52:55], s19 offen {K0SC}", "s")
    stamp(a, 2)
    stamp_flush(a, 0, 3, 15, 2, 13, "s18")
    a.label("K0_END")
    a("s_endpgm")
    a.label("K0_AUX")
    a.vm = []; a.lg = []; a.smem = True
    a("s_sub_u32 s18, s18, 4")
    a("v_and_b32 v3, 15, v2")
    a("v_lshrrev_b32 v4, 4, v2")
    a("s_lshr_b32 s20, s2, 4")
    a("s_and_b32 s21, s2, 15")
    a("s_lshl_b32 s19, s2, 2"); a("s_add_u32 s19, s19, s18")
    a("s_lshl_b32 s22, s19, 11")
    a("v_lshlrev_b32 v5, 4, v2")
    a(f"v_mul_u32_u24 v6, {8*3584}, v4")
    a("v_lshl_add_u32 v6, v3, 2, v6")
    a(f"s_mul_i32 s23, s21, {32*3584}"); a("s_mul_i32 s24, s20, 224"); a("s_add_u32 s23, s23, s24")
    a("s_lshl_b32 s24, s18, 6"); a("s_add_u32 s23, s23, s24")
    a("v_add_u32 v6, s23, v6")
    a("s_cmp_lt_u32 s18, 3")
    a("s_cselect_b32 s25, 16, 8")
    a("v_cmp_gt_u32 vcc, s25, v3")
    a("s_cselect_b32 s26, 64, 8")
    a("s_cselect_b32 s27, 16, 8")
    a("v_cndmask_b32 v6, v14, v6, vcc")
    a("v_cndmask_b32 v7, v14, v5, vcc")
    a("s_lshl_b32 s28, s21, 2"); a("s_lshl_b32 s29, s18, 1"); a("s_add_u32 s28, s28, s29")
    a("s_lshl_b32 s29, s21, 1"); a("s_add_u32 s29, s29, 64")
    a("s_cmp_eq_u32 s18, 2"); a("s_cselect_b32 s28, s29, s28")
    a("s_add_u32 s29, s21, 96")
    a("s_cmp_eq_u32 s18, 3"); a("s_cselect_b32 s28, s29, s28")
    a("s_lshl_b32 s28, s28, 10"); a("s_mul_i32 s29, s20, 114688"); a("s_add_u32 s28, s28, s29")
    a(f"s_add_u32 s28, s28, {WS_W1P:#x}")
    a("s_lshl_b32 s26, s26, 4"); a("s_add_u32 s26, s26, s28")
    a("v_lshlrev_b32 v8, 6, v3")
    a("v_cndmask_b32 v8, v14, v8, vcc")
    a("v_cmp_eq_u32 vcc, 0, v4")
    a("s_mul_i32 s29, s20, 7168"); a("s_lshl_b32 s30, s18, 11"); a("s_add_u32 s29, s29, s30")
    a("s_lshl_b32 s30, s21, 2"); a("s_add_u32 s29, s29, s30"); a(f"s_add_u32 s29, s29, {WS_C1P:#x}")
    a("v_cndmask_b32 v8, v14, v8, vcc")
    a("s_lshl_b32 s27, s27, 6"); a("s_add_u32 s27, s27, s29")
    a("s_cmp_lt_u32 s18, 3")
    a("s_cselect_b32 s30, 13, 10")
    a("s_cselect_b32 s31, 1, 2")
    a("s_cselect_b32 s33, 4, 2")
    a("s_lshl_b32 s31, s31, 10")
    a("v_lshlrev_b32 v9, s30, v4")
    a("v_lshl_add_u32 v9, v3, 2, v9")
    a("s_mul_i32 s32, s20, 112"); a("s_lshl_b32 s34, s18, 5"); a("s_add_u32 s32, s32, s34"); a("s_lshl_b32 s32, s32, 10")
    a("s_lshl_b32 s34, s21, 6"); a("s_add_u32 s32, s32, s34")
    a("v_cmp_gt_u32 vcc, s33, v4")
    a("v_add_u32 v9, s32, v9")
    a("v_lshrrev_b32 v10, 1, v4"); a("v_lshlrev_b32 v10, 11, v10")
    a("v_and_b32 v11, 1, v4"); a("v_lshl_add_u32 v10, v11, 9, v10"); a("v_lshl_add_u32 v10, v3, 4, v10")
    a("v_cndmask_b32 v9, v14, v9, vcc")
    a("v_cndmask_b32 v10, v14, v10, vcc")
    a("s_lshr_b32 s32, s21, 1"); a("s_mul_i32 s32, s32, 229376")
    a("s_and_b32 s34, s21, 1"); a("s_lshl_b32 s34, s34, 10"); a("s_add_u32 s32, s32, s34")
    a("s_mul_i32 s34, s20, 14336"); a("s_add_u32 s32, s32, s34")
    a("s_lshl_b32 s34, s18, 12"); a("s_add_u32 s32, s32, s34")
    a(f"s_add_u32 s32, s32, {WS_W2P:#x}")
    a.wait_lg0()
    stamp(a, 0)
    a.srd(36, 4, 0x200000)
    a.srd(40, 12, 512*3584)
    a.srd(44, 60, 1792*1024)
    a.srd(52, 14, WS_SIZE)
    QS, W1R, W2R = 16, 24, 32
    a.vmem(f"buffer_load_dwordx4 v[{QS}:{QS+3}], v5, s[36:39], s22 offen", "qs")
    a.vmem(f"buffer_load_dwordx4 v[{QS+4}:{QS+7}], v5, s[36:39], s22 offen offset:1024", "qs")
    a("s_mov_b32 s34, 0")
    for e in range(8):
        a.vmem(f"buffer_load_dword v{W1R+e}, v6, s[40:43], s34 offen", "w1")
        if e < 7: a("s_add_u32 s34, s34, 3584")
    a("s_mov_b32 s34, 0")
    for e in range(8):
        a.vmem(f"buffer_load_dword v{W2R+e}, v9, s[44:47], s34 offen", "w2")
        if e < 7: a("s_add_u32 s34, s34, s31")
    a("v_mov_b32 v40, -1"); a("v_mov_b32 v41, -1")
    for d in range(4): a(f"v_mov_b32 v{44+d}, 0")
    a("v_lshlrev_b32 v42, 3, v2")
    a("s_lshl_b32 s34, s19, 9"); a(f"s_add_u32 s34, s34, {WS_ST:#x}")
    a.vmem(f"buffer_store_dwordx2 v[40:41], v42, s[52:55], s34 offen", "s")
    a(f"s_cmp_ge_u32 s19, {FLAG_BYTES//1024}")
    a("s_cbranch_scc1 K0_NOFL")
    a("s_lshl_b32 s34, s19, 10"); a(f"s_add_u32 s34, s34, {WS_FLAG:#x}")
    a(f"buffer_store_dwordx4 v[44:47], v5, s[52:55], s34 offen")
    a.label("K0_NOFL")
    if env("CODEPF", 1):
        a("s_getpc_b64 s[56:57]")
        a.label("K0_PC")
        a("s_add_u32 s56, s56, k12_kernel-K0_PC")
        a("s_addc_u32 s57, s57, 0")
        a("s_and_b32 s57, s57, 0xffff")
        a("s_mov_b32 s58, K12_FAST_END-k12_kernel")
        a("s_mov_b32 s59, 0x20000")
        a("s_lshl_b32 s34, s17, 2"); a("s_add_u32 s34, s34, s18"); a("s_lshl_b32 s34, s34, 10")
        a.vmem("buffer_load_dwordx4 v[48:51], v5, s[56:59], s34 offen", "pf")
    X = 56
    a.wait_vm("qs")
    for r in range(2):
        for d in range(4):
            unpack_lo(a, X+8*r+2*d, QS+4*r+d); unpack_hi(a, X+1+8*r+2*d, QS+4*r+d)
    for r in range(2):
        b = X+8*r
        a(f"v_pk_add_f32 {pk(72+2*r)}, {pk(b)}, {pk(b+2)}"); a(f"v_pk_add_f32 {pk(76+2*r)}, {pk(b+4)}, {pk(b+6)}")
    for r in range(2): a(f"v_pk_add_f32 {pk(72+2*r)}, {pk(72+2*r)}, {pk(76+2*r)}")
    for r in range(2): a(f"v_add_f32 v{80+2*r}, v{72+2*r}, v{73+2*r}")
    wave_sum(a, [80, 82], [84, 85])
    for r in range(2): a(f"v_mul_f32 v{80+2*r}, 0x3b000000, v{80+2*r}")
    for r in range(2):
        b = X+8*r
        for e in range(8): a(f"v_sub_f32 v{b+e}, v{b+e}, v{80+2*r}")
        a(f"v_mul_f32 v{81+2*r}, v{b}, v{b}")
        for e in range(1, 8): a(f"v_fmac_f32 v{81+2*r}, v{b+e}, v{b+e}")
    wave_sum(a, [81, 83], [84, 85])
    for r in range(2): a(f"v_mul_f32 v{81+2*r}, 0x3b000000, v{81+2*r}")
    round_bf16_pair(a, 80, 82, 84)
    round_bf16_pair(a, 81, 83, 84)
    for r in range(2): a(f"v_add_f32 v{81+2*r}, 0x3727c5ac, v{81+2*r}")
    round_bf16_pair(a, 81, 83, 84)
    for r in range(2): a(f"v_sqrt_f32 v{81+2*r}, v{81+2*r}")
    a.nop(1)
    round_bf16_pair(a, 81, 83, 84)
    for r in range(2): a(f"v_rcp_f32 v{81+2*r}, v{81+2*r}")
    a("v_cmp_eq_u32 vcc, 0, v2")
    a("s_lshl_b32 s34, s19, 4"); a(f"s_add_u32 s34, s34, {WS_QST:#x}")
    a("v_cndmask_b32 v84, v14, 0, vcc")
    a.vmem("buffer_store_dwordx4 v[80:83], v84, s[52:55], s34 offen", "s")
    stamp(a, 1)
    a("s_mov_b32 s22, 0x05040100"); a("s_mov_b32 s23, 0x07060302")
    a.wait_vm("w1")
    for d in range(4):
        a(f"v_perm_b32 v{88+d}, v{W1R+1+2*d}, v{W1R+2*d}, s22")
        a(f"v_perm_b32 v{92+d}, v{W1R+1+2*d}, v{W1R+2*d}, s23")
    a.vmem(f"buffer_store_dwordx4 v[88:91], v7, s[52:55], s28 offen {K0SC}", "s")
    a.vmem(f"buffer_store_dwordx4 v[92:95], v7, s[52:55], s26 offen {K0SC}", "s")
    a.wait_vm("w2")
    for d in range(4):
        a(f"v_perm_b32 v{96+d}, v{W2R+1+2*d}, v{W2R+2*d}, s22")
        a(f"v_perm_b32 v{100+d}, v{W2R+1+2*d}, v{W2R+2*d}, s23")
    a.vmem(f"buffer_store_dwordx4 v[96:99], v10, s[52:55], s32 offen {K0SC}", "s")
    a.vmem(f"buffer_store_dwordx4 v[100:103], v10, s[52:55], s32 offen offset:256 {K0SC}", "s")
    for e in range(8):
        unpack_lo(a, X+2*e, W1R+e); unpack_hi(a, X+2*e+1, W1R+e)
    for e in range(4): a(f"v_pk_add_f32 {pk(X+2*e)}, {pk(X+2*e)}, {pk(X+8+2*e)}")
    for e in range(2): a(f"v_pk_add_f32 {pk(X+2*e)}, {pk(X+2*e)}, {pk(X+4+2*e)}")
    a(f"v_pk_add_f32 {pk(X)}, {pk(X)}, {pk(X+2)}")
    quad_sum(a, [X, X+1], [X+2, X+3])
    a.vmem(f"buffer_store_dword v{X}, v8, s[52:55], s29 offen", "s")
    a.vmem(f"buffer_store_dword v{X+1}, v8, s[52:55], s27 offen", "s")
    stamp(a, 2)
    stamp_flush(a, 1, 3, 15, 2, 13, "s18")
    a("s_endpgm")
    return a.text()
```

```python
from g2common import *
L_RED = 114688
L_UR = [0x0000, 0x1200]
L_HE = [0x2400, 0x2400 + 8320]
L_HO = [0x2400 + 4160, 0x2400 + 12480]
G2LOOK = env("G2LOOK", 10)
G1LOOK = env("G1LOOK", 8)
A0LOOK = env("A0LOOK", 5)
W2CONV = env("W2CONV", 28)
PRETOUCH = env("PRETOUCH", 1)
FORCE_SLOW = env("FORCE_SLOW", 0)
STAMP_NAMES = ["start","lds","conv","cst","cfl","go","p1a","g1a","g2a","red","polS","flX","polX","p1b","g1b","g2b","out","end"]

def poll(a, voff, soff, cmp_, reg=14, off=0):
    L = a.newlabel("POLL"); E = a.newlabel("POLLX")
    a(f"s_mov_b32 s40, {SPIN_MAX}")
    a.label(L)
    a(f"buffer_load_dword v{reg}, {voff}, s[52:55], {soff} offen offset:{off} sc1")
    a("s_sub_u32 s40, s40, 1")
    a("s_cbranch_scc1 " + E)
    a("s_waitcnt vmcnt(0)")
    a(cmp_)
    a("s_cbranch_vccnz " + L)
    a.label(E)
    a("s_waitcnt vmcnt(0)")

def ln_scalars(a, mean, var, tmp, keep_s=None):
    for i, (m, v) in enumerate(zip(mean, var)):
        round_bf16_pair(a, m, v, tmp)
        a(f"v_add_f32 v{v}, 0x3727c5ac, v{v}")
        a(f"v_cvt_pk_bf16_f32 v{tmp}, v{v}, v{v}")
        unpack_lo(a, v, tmp)
        a(f"v_sqrt_f32 v{v}, v{v}")
        a.nop(1)
        a(f"v_cvt_pk_bf16_f32 v{tmp}, v{v}, v{v}")
        s = keep_s[i] if keep_s else v
        unpack_lo(a, s, tmp)
        a(f"v_rcp_f32 v{v}, v{s}")
        a.nop(1)

def gen_k12():
    a = Asm()
    XM, YT, WX, XT = 224, 232, 240, 254
    ST = 255 if STAMPS else None
    a("s_cmp_ge_u32 s2, 256")
    a("s_cbranch_scc1 K12_END")
    a.sload(f"s_load_dwordx4 s[4:7], s[0:1], {KA_H}")
    a.sload(f"s_load_dwordx2 s[14:15], s[0:1], {KA_WS}")
    a.sload(f"s_load_dwordx2 s[8:9], s[0:1], {KA_B1}")
    a.sload(f"s_load_dwordx4 s[80:83], s[0:1], {KA_B2}")
    a("s_getreg_b32 s42, hwreg(HW_REG_XCC_ID)")
    a("s_and_b32 s21, s2, 7")
    a("s_lshr_b32 s27, s2, 3")
    a("s_lshl_b32 s44, s21, 5"); a("s_add_u32 s44, s44, s27")
    a("s_lshl_b32 s45, s44, 13")
    a("v_lshrrev_b32 v1, 6, v0")
    a("v_and_b32 v2, 63, v0")
    a("v_readfirstlane_b32 s18, v1")
    a("v_and_b32 v3, 15, v0")
    a("v_bfe_u32 v4, v0, 4, 2")
    a("v_lshlrev_b32 v5, 5, v0")
    a("v_lshlrev_b32 v6, 4, v0")
    a(f"v_mov_b32 v14, {OOB}")
    a("v_subrev_u32 v7, 4, v6")
    a("v_cmp_eq_u32 vcc, 0, v0")
    a("v_lshlrev_b32 v8, 9, v1")
    a("v_lshl_add_u32 v8, v3, 4, v8")
    a("v_cndmask_b32 v7, v7, v14, vcc")
    a("v_cndmask_b32 v13, v14, 0, vcc")
    a("v_lshl_add_u32 v8, v4, 2, v8")
    a("v_lshlrev_b32 v9, 3, v8")
    a("v_lshlrev_b32 v8, 2, v8")
    a("v_lshlrev_b32 v16, 4, v2")
    if STAMPS: a("v_mov_b32 v15, 0")
    a("s_lshl_b32 s16, s21, 1"); a("s_lshr_b32 s26, s27, 4"); a("s_add_u32 s16, s16, s26")
    a("s_and_b32 s17, s27, 15")
    a("s_lshr_b32 s19, s17, 3")
    a("s_and_b32 s20, s17, 7")
    a("s_lshr_b32 s22, s18, 1")
    a("s_and_b32 s23, s18, 1")
    a("s_and_b32 s42, s42, 15"); a("s_add_u32 s42, s42, 1")
    a("s_add_u32 s46, s45, 4096")
    a.wait_lg0()
    stamp(a, 0)
    a.srd(52, 14, WS_SIZE)
    a.srd(48, 4, 0x200000)
    ACC = 24; AS = [56, 120]; BS = [88, 152]
    EU, EQ, ES, ED, UD = 184, 192, 200, 216, 236
    U0, H0, H1, HP = 56, 64, 68, 72
    a.vmem(f"buffer_load_dwordx4 v[{H0}:{H0+3}], v6, s[48:51], s45 offen", "h0")
    a.vmem(f"buffer_load_dword v{HP}, v7, s[48:51], s45 offen", "h0p")
    a.vmem(f"buffer_load_dwordx4 v[{H1}:{H1+3}], v6, s[48:51], s46 offen", "h1")
    a.vmem(f"buffer_load_dword v{HP+1}, v7, s[48:51], s46 offen", "h1p")
    a.vmem(f"buffer_load_dwordx4 v[{U0}:{U0+3}], v5, s[52:55], s45 offen", "u0")
    a.vmem(f"buffer_load_dwordx4 v[{U0+4}:{U0+7}], v5, s[52:55], s45 offen offset:16", "u1")
    a("s_lshl_b32 s26, s44, 2"); a(f"s_add_u32 s26, s26, {WS_FLAG + FL_XT:#x}")
    a("v_mov_b32 v10, s42")
    a.vmem("buffer_store_dword v10, v13, s[52:55], s26 offen sc0 sc1", "xt")
    a.srd(64, 6, 1024)
    a.srd(84, 8, 3584)
    a(f"s_add_u32 s29, s45, {WS_QP:#x}")
    a(f"s_mov_b32 s30, {WS_QST:#x}")
    a("s_lshl_b32 s31, s44, 2")
    a("v_mov_b32 v17, 0")
    a.vmem(f"buffer_load_dword v{ED}, v17, s[64:67], s31 offen", "e")
    for pp in range(2):
        a.vmem(f"buffer_load_dwordx4 v[{EU+4*pp}:{EU+3+4*pp}], v8, s[52:55], s45 offen offset:{1024*pp}", "e")
        a.vmem(f"buffer_load_dwordx4 v[{EQ+4*pp}:{EQ+3+4*pp}], v8, s[52:55], s29 offen offset:{1024*pp}", "e")
        a.vmem(f"buffer_load_dwordx4 v[{ES+8*pp}:{ES+3+8*pp}], v9, s[52:55], s30 offen offset:{2048*pp}", "e")
        a.vmem(f"buffer_load_dwordx4 v[{ES+4+8*pp}:{ES+7+8*pp}], v9, s[52:55], s30 offen offset:{2048*pp+16}", "e")
    a.srd(56, 82, 0x200000)
    a.srd(60, 80, 1024)
    a("v_lshlrev_b32 v19, 2, v3")
    a("v_and_b32 v20, 7, v3"); a("v_lshlrev_b32 v20, 2, v20"); a("v_lshrrev_b32 v21, 3, v3"); a("v_lshl_add_u32 v20, v21, 1, v20")
    a("s_mul_i32 s29, s17, 224")
    for p in range(3): a.vmem(f"buffer_load_dword v{223+p}, v19, s[84:87], s29 offen offset:{64*p}", "b1")
    a.vmem(f"buffer_load_ushort v226, v20, s[84:87], s29 offen offset:192", "b1")
    a.vmem("buffer_load_dword v227, v17, s[60:63], 0 offen", "b1")
    a.vmem("buffer_load_dword v227, v17, s[56:59], s45 offen", "b1")
    if PRETOUCH:
        a("s_lshl_b32 s29, s16, 2"); a("s_add_u32 s29, s29, s18"); a("s_mul_i32 s29, s29, 114688")
        a("s_mul_i32 s30, s17, 7168"); a("s_add_u32 s29, s29, s30"); a(f"s_add_u32 s29, s29, {WS_H1:#x}")
        a("v_lshlrev_b32 v21, 7, v2")
        a("v_cmp_gt_u32 vcc, 56, v2"); a("s_nop 1"); a("v_cndmask_b32 v21, v14, v21, vcc")
        a.vmem("buffer_load_dword v228, v21, s[52:55], s29 offen", "b1")
    Z = 76
    for d in range(4): a(f"v_mov_b32 v{Z+d}, 0")
    a("v_lshrrev_b32 v18, 5, v0")
    a(f"v_mul_u32_u24 v18, {L_UR[1]}, v18")
    a("v_and_b32 v19, 31, v0")
    a("v_lshl_add_u32 v18, v19, 4, v18")
    a(f"v_add_u32 v18, {L_RED+4096}, v18")
    a("v_subrev_u32 v19, 64, v0")
    a("v_lshrrev_b32 v20, 1, v19")
    a("v_mul_u32_u24 v20, 4160, v20")
    a("v_and_b32 v21, 1, v19")
    a("v_lshl_add_u32 v20, v21, 4, v20")
    a(f"v_add_u32 v20, {L_RED+L_HE[0]}, v20")
    a("v_cmp_gt_u32 vcc, 64, v0")
    a("s_mul_i32 s24, s17, 114688")
    a(f"s_add_u32 s24, s24, {WS_W1P:#x}")
    a("v_cndmask_b32 v18, v20, v18, vcc")
    a("v_cmp_gt_u32 vcc, 72, v0")
    a("s_and_saveexec_b64 s[34:35], vcc")
    a.lds(f"ds_write_b128 v18, v[{Z}:{Z+3}]", "pad")
    a("s_mov_b64 exec, s[34:35]")
    a("s_lshl_b32 s25, s18, 12"); a("s_add_u32 s24, s24, s25")
    def w1_dma(i):
        a("s_mov_b32 m0, s25")
        a("s_nop 0")
        for c in range(4): a.vmem(f"buffer_load_dwordx4 v16, s[52:55], s24 offen offset:{1024*c} lds", "w1")
        if i < 6: a("s_add_u32 s25, s25, 16384"); a("s_add_u32 s24, s24, 16384")
    NW1PRE = env("NW1PRE", 3)
    for i in range(NW1PRE): w1_dma(i)
    a("v_and_b32 v10, 1, v3")
    a("v_cmp_eq_u32 vcc, 1, v10")
    a(f"v_mov_b32 v11, {L_RED+L_HO[0]+32+20}")
    a(f"v_mov_b32 v12, {L_RED+L_HE[0]+32+18}")
    a("v_cndmask_b32 v10, v11, v12, vcc")
    a("v_lshl_add_u32 v10, v3, 1, v10")
    a("v_lshlrev_b32 v11, 4, v4")
    a("v_sub_u32 v10, v10, v11")
    a("s_mul_i32 s26, s23, 8320"); a("s_lshl_b32 s29, s22, 8"); a("s_add_u32 s26, s26, s29")
    a("v_add_u32 v18, s26, v10")
    for k in range(1, 4): a(f"v_add_u32 v{18+k}, {1024*k}, v18")
    a(f"s_mul_i32 s26, s23, {L_UR[1]}"); a("s_add_u32 s26, s26, s29"); a(f"s_add_u32 s26, s26, {L_RED+528}")
    a("v_lshlrev_b32 v22, 5, v3")
    a("v_lshl_add_u32 v22, v4, 4, v22")
    a("v_sub_u32 v22, s26, v22")
    a("s_mov_b32 s78, 0x05040100"); a("s_mov_b32 s79, 0x07060302")
    a(f"v_sub_u32 v23, {L_RED+4080}, v6")
    a(f"v_add_u32 v6, {L_RED}, v6")
    a("s_mul_i32 s43, s20, 229376"); a("s_mul_i32 s26, s18, 57344"); a("s_add_u32 s43, s43, s26")
    a(f"s_add_u32 s43, s43, {WS_W2P:#x}")
    a("s_lshl_b32 s26, s23, 10")
    a("v_add_u32 v220, s26, v16")
    a("v_xor_b32 v221, 1024, v220")
    w2l = []; wv = [220, 221]
    for ks in range(28):
        for c in range(2):
            w2l.append(lambda ks=ks, c=c: a.vmem(f"buffer_load_dwordx4 a[{(2*ks+c)*4}:{(2*ks+c)*4+3}], v{wv[c]}, s[52:55], s43 offen offset:{2048*(ks&1)}", "w2"))
        if ks & 1: w2l.append(lambda: a("s_add_u32 s43, s43, 4096"))
    def issue_vm(lst, n):
        while lst and n > 0:
            before = len(a.vm); lst.pop(0)()
            if len(a.vm) > before: n -= 1
    for ch, (H, P) in enumerate(((H0, HP), (H1, HP+1))):
        a.wait_vm(f"h{ch}p")
        a.lds(f"ds_write_b128 v6, v[{H}:{H+3}] offset:{L_HE[ch]+32}", "he")
        O = 88 + 4*ch
        a(f"v_alignbit_b32 v{O}, v{H}, v{P}, 16")
        for d in range(1, 4): a(f"v_alignbit_b32 v{O+d}, v{H+d}, v{H+d-1}, 16")
        a.lds(f"ds_write_b128 v6, v[{O}:{O+3}] offset:{L_HO[ch]+32}", "ho")
    a.wait_vm("u1")
    R0 = 80
    for d in range(4):
        a(f"v_perm_b32 v{R0+d}, v{U0+6-2*d}, v{U0+7-2*d}, s78")
        a(f"v_perm_b32 v{R0+4+d}, v{U0+6-2*d}, v{U0+7-2*d}, s79")
    a.lds(f"ds_write_b128 v23, v[{R0}:{R0+3}] offset:{L_UR[0]}", "ur")
    a.lds(f"ds_write_b128 v23, v[{R0+4}:{R0+7}] offset:{L_UR[1]}", "ur")
    a.wait_lg0()
    a("s_barrier")
    stamp(a, 1)
    F = Fill()
    T0, T1 = 252, 253
    F.add(lambda: a.wait_vm("e"))
    F.ins(a, f"v_lshlrev_b32 v{ED+1}, 16, v{ED}"); F.ins(a, f"v_and_b32 v{ED+2}, {MASKHI}, v{ED}")
    for e in range(8):
        m, r = ES + 2*e, ES + 2*e + 1
        F.ins(a, f"v_lshlrev_b32 v{T0}, 16, v{EU+e}"); F.ins(a, f"v_and_b32 v{T1}, {MASKHI}, v{EU+e}")
        F.ins(a, f"v_mul_f32 v{UD+2*e}, v{T0}, v{ED+1}"); F.ins(a, f"v_mul_f32 v{UD+2*e+1}, v{T1}, v{ED+2}")
        F.ins(a, f"v_lshlrev_b32 v{T0}, 16, v{EQ+e}"); F.ins(a, f"v_and_b32 v{T1}, {MASKHI}, v{EQ+e}")
        F.ins(a, f"v_sub_f32 v{T0}, v{T0}, v{m}"); F.ins(a, f"v_sub_f32 v{T1}, v{T1}, v{m}")
        F.ins(a, f"v_mul_f32 v{m}, v{T0}, v{r}"); F.ins(a, f"v_mul_f32 v{r}, v{T1}, v{r}")
    F.ins(a, "v_and_b32 v12, 31, v2"); F.ins(a, "v_lshlrev_b32 v12, 2, v12")
    F.ins(a, "s_lshl_b32 s47, s21, 7"); F.ins(a, f"s_add_u32 s47, s47, {WS_FLAG + FL_XT:#x}")
    F.add(lambda: a.vmem(f"buffer_load_dword v222, v12, s[52:55], s47 offen sc1", "xtl"))
    VF = []
    for i in range(NW1PRE, 7): VF.append(lambda i=i: w1_dma(i))
    def load_frags(rp):
        st = rp & 1; out = []
        for n in range(8):
            A = AS[st] + 4*n; B = BS[st] + 4*n
            o = 128*(n & 1) + 16*rp
            out.append(lambda A=A, n=n, o=o: a.lds(f"ds_read2_b32 v[{A}:{A+1}], v{18+(n>>1)} offset0:{o} offset1:{o+1}", f"A{rp}_{n}"))
            out.append(lambda A=A, n=n, o=o: a.lds(f"ds_read2_b32 v[{A+2}:{A+3}], v{18+(n>>1)} offset0:{o+2} offset1:{o+3}", f"A{rp}_{n}b"))
            out.append(lambda B=B, n=n: a.lds(f"ds_read_b128 v[{B}:{B+3}], v22 offset:{512*(7-n)+64*rp}", f"B{rp}_{n}"))
        return out
    pend = load_frags(0)
    for f in pend[:12]: f()
    pend = pend[12:]
    first = [True]*8
    cnt = 0; w2left = W2CONV
    for rp in range(4):
        st = rp & 1
        if rp < 3: pend += load_frags(rp+1)
        pairs = sorted([(x, c) for x in range(8) for c in range(8) if x + c <= 7], key=lambda t: (max(t), t[0]+t[1]))
        for (x, c) in pairs:
            p = x + c
            a.wait_lg([f"A{rp}_{x}b", f"B{rp}_{c}"])
            A = AS[st] + 4*x; B = BS[st] + 4*c; C = ACC + 4*p
            src = "0" if first[p] else f"v[{C}:{C+3}]"
            first[p] = False
            a(f"v_mfma_f32_16x16x32_bf16 v[{C}:{C+3}], v[{A}:{A+3}], v[{B}:{B+3}], {src}")
            cnt += 1
            if pend: pend.pop(0)()
            if rp >= 1: F.emit(2 if not pend else 1)
            if VF:
                if cnt % 16 == 4: VF.pop(0)()
            elif w2left and cnt % 3 == 0:
                issue_vm(w2l, 1); w2left -= 1
    F.flush()
    stamp(a, 2)
    a(f"v_lshl_add_u32 v10, v1, 13, v16"); a(f"v_add_u32 v10, {L_RED}, v10")
    a(f"v_lshl_add_u32 v11, v1, 11, v16"); a(f"v_add_u32 v11, {L_RED}, v11")
    a(f"s_add_u32 s29, s45, {WS_YP:#x}")
    a(f"s_add_u32 s30, s45, {WS_X1P:#x}")
    a("s_barrier")
    a.nop(2)
    for p in range(8):
        a.lds(f"ds_write_b128 v10, v[{ACC+4*p}:{ACC+4*p+3}] offset:{1024*p}", "xw")
    QF = 120
    for e in range(8):
        unpack_lo(a, QF+2*e, EQ+e); unpack_hi(a, QF+2*e+1, EQ+e)
    a.wait_lg0()
    a("s_barrier")
    X = 56
    for pp in range(2):
        for src in range(4):
            r = X + 16*pp + 4*src
            a.lds(f"ds_read_b128 v[{r}:{r+3}], v11 offset:{8192*src+1024*pp}", f"x{pp}")
    YO, XO = 96, 104
    for pp in range(2):
        a.wait_lg(f"x{pp}")
        b = X + 16*pp
        for h in range(4): a(f"v_pk_add_f32 {pk(b+2*h)}, {pk(b+2*h)}, {pk(b+8+2*h)}")
        for i in range(4):
            e = 4*pp + i
            a(f"v_add_f32 v{b+i}, v{b+i}, v{UD+2*e}"); a(f"v_add_f32 v{b+4+i}, v{b+4+i}, v{UD+2*e+1}")
            a(f"v_cvt_pk_bf16_f32 v{YO+e}, v{b+i}, v{b+4+i}")
        for i in range(4):
            e = 4*pp + i
            unpack_lo(a, b+8+2*i, YO+e); unpack_hi(a, b+9+2*i, YO+e)
        for i in range(4):
            e = 4*pp + i
            a(f"v_pk_fma_f32 {pk(b+8+2*i)}, {pk(b+8+2*i)}, {pk(ES+2*e)}, {pk(QF+2*e)}")
        for i in range(4):
            a(f"v_cvt_pk_bf16_f32 v{XO+4*pp+i}, v{b+8+2*i}, v{b+9+2*i}")
        a.vmem(f"buffer_store_dwordx4 v[{XO+4*pp}:{XO+4*pp+3}], v8, s[52:55], s30 offen offset:{1024*pp} sc0 sc1", "so")
        a.vmem(f"buffer_store_dwordx4 v[{YO+4*pp}:{YO+4*pp+3}], v8, s[52:55], s29 offen offset:{1024*pp} sc0 sc1", "so")
    stamp(a, 3)
    a("v_mov_b32 v5, v4"); a("v_mov_b32 v4, v3"); a("v_mov_b32 v3, v16")
    a("v_mov_b32 v0, v220"); a("v_mov_b32 v1, v221")
    a("v_mov_b32 v13, v12")
    wv[:] = [0, 1]
    a("v_add_u32 v6, 57344, v3")
    a("v_cmp_eq_u32 vcc, 0, v2")
    a(f"v_mov_b32 v9, {OOB}")
    a("s_lshl_b32 s41, s16, 10"); a(f"s_add_u32 s41, s41, {WS_FLAG:#x}")
    a("v_cndmask_b32 v9, v9, 0, vcc")
    a("v_and_b32 v10, 31, v2")
    a("v_lshrrev_b32 v12, 5, v2")
    a("v_bfe_u32 v11, v2, 4, 1")
    a("v_lshl_add_u32 v11, v4, 1, v11")
    a("s_lshl_b32 s26, s16, 7"); a("s_lshl_b32 s28, s19, 6"); a("s_add_u32 s26, s26, s28")
    a("s_lshl_b32 s28, s22, 5"); a("s_add_u32 s26, s26, s28")
    a("v_add_u32 v11, s26, v11")
    a("v_add_u32 v10, s26, v10")
    a("s_lshl_b32 s28, s20, 1"); a("s_add_u32 s28, s28, s23")
    a.wait_vm("xtl")
    a("v_mov_b32 v14, v222")
    a("v_cmp_eq_u32 vcc, 0, v222")
    a("s_cbranch_vccz K12_XT_OK")
    poll(a, "v13", "s47", "v_cmp_eq_u32 vcc, 0, v14")
    a.label("K12_XT_OK")
    a("v_cmp_ne_u32 vcc, s42, v14")
    a("v_mov_b32 v17, 1")
    a("s_lshl_b32 s26, s21, 2"); a("s_add_u32 s26, s26, s18"); a("s_lshl_b32 s26, s26, 5"); a("s_add_u32 s26, s26, s27"); a("s_lshl_b32 s26, s26, 2")
    a(f"s_add_u32 s26, s26, {WS_FLAG + FL_LF:#x}")
    if FORCE_SLOW: a("s_branch K12_SLOW")
    a("s_cbranch_vccnz K12_SLOW")
    state = (list(a.vm), list(a.lg), list(w2l))

    AF = 128; WR = 16; NW = 9
    SUM, SS, ONES = 52, 60, 68
    RI, AX, VH1, VH2 = 52, 54, 58, 59
    def acc1(ft, rt): return 72 + 16*(ft >> 1) + 8*rt + 4*(ft & 1) if ft < 6 else 120 + 4*rt
    ACC2 = 128
    def hslot(n): return 72 + 4*n if n < 8 else 192 + 4*((n - 8) % 16)
    korder = []
    for stage, iset in enumerate(((0, 1), (2, 3), (4, 5), (6,))):
        for jl in range(4):
            for i in iset: korder.append((stage + 1, 7*jl + i))

    def make_ax(b, M, S):
        for rt in range(2):
            b(f"v_cvt_pk_bf16_f32 v{AX+2*rt}, -v{M+rt}, -v{M+rt}")
            b(f"v_cvt_pk_bf16_f32 v{AX+2*rt+1}, -v{M+rt}, v{S+rt}")
        for r in range(4): b(f"v_cndmask_b32 v{AX+r}, 0, v{AX+r}, s[34:35]")

    def stats0(b):
        b("v_lshrrev_b32 v7, 2, v4")
        b("v_cmp_eq_u32 s[34:35], v7, v5")
        b("v_and_b32 v7, 3, v4")
        b("v_cmp_eq_u32 s[36:37], 1, v7")
        b("v_cmp_eq_u32 s[38:39], 2, v7")
        b("v_cmp_eq_u32 vcc, 3, v7")
        b.nop(3)
        for rt in range(2):
            S = SS + 4*rt; d = 68 + rt
            b(f"v_cndmask_b32 v{d}, v{S}, v{S+1}, s[36:37]")
            b(f"v_cndmask_b32 v{d}, v{d}, v{S+2}, s[38:39]")
            b(f"v_cndmask_b32 v{d}, v{d}, v{S+3}, vcc")
            b(f"v_cndmask_b32 v{d}, 0, v{d}, s[34:35]")
        quad_sum(b, [68, 69], [7, 8])
        b("v_cmp_eq_u32 s[34:35], 0, v5")
        for rt in range(2):
            b(f"v_mul_f32 v{70+rt}, 0x3b000000, v{SUM+4*rt}")
        for rt in range(2):
            b(f"v_mul_f32 v{68+rt}, 0x3b000000, v{68+rt}")
            b(f"v_fma_f32 v{RI+rt}, -v{70+rt}, v{70+rt}, v{68+rt}")
            b(f"v_max_f32 v{RI+rt}, 0, v{RI+rt}")
        ln_scalars(b, [70, 71], [RI, RI+1], 7, keep_s=[68, 69])
        make_ax(b, 70, 68)
    SD1 = 60
    SD1 = 56
    def stats1(b):
        for rt in range(2):
            S = SD1 + 8*rt
            b(f"v_add_f32 v{S}, v{S}, v{S+2}"); b(f"v_add_f32 v{S+1}, v{S+1}, v{S+3}")
            b(f"v_add_f32 v{S+4}, v{S+4}, v{S+6}"); b(f"v_add_f32 v{S+5}, v{S+5}, v{S+7}")
        b(f"v_add_f32 v70, v{SD1}, v{SD1+4}"); b(f"v_add_f32 v52, v{SD1+1}, v{SD1+5}")
        b(f"v_add_f32 v71, v{SD1+8}, v{SD1+12}"); b(f"v_add_f32 v53, v{SD1+9}, v{SD1+13}")
        quad_sum(b, [70, 71, 52, 53], [56, 57, 58, 59])
        b("v_cmp_eq_u32 s[34:35], 0, v5")
        for rt in range(2):
            b(f"v_mul_f32 v{70+rt}, 0x3b000000, v{70+rt}")
            b(f"v_mul_f32 v{RI+rt}, 0x3b000000, v{RI+rt}")
            b(f"v_fma_f32 v{RI+rt}, -v{70+rt}, v{70+rt}, v{RI+rt}")
            b(f"v_max_f32 v{RI+rt}, 0, v{RI+rt}")
        ln_scalars(b, [70, 71], [RI, RI+1], 56, keep_s=[68, 69])
        make_ax(b, 70, 68)
    def haddr(b):
        b(f"v_lshlrev_b32 v{VH1}, 9, v5")
        b(f"v_lshl_add_u32 v{VH1}, v4, 4, v{VH1}")
        b(f"v_lshrrev_b32 v{VH2}, 1, v5")
        b(f"v_lshlrev_b32 v{VH2}, 9, v{VH2}")
        b(f"v_lshl_add_u32 v{VH2}, v4, 4, v{VH2}")
        b("v_and_b32 v60, 1, v5")
        b(f"v_lshl_add_u32 v{VH2}, v60, 3, v{VH2}")
        b("s_lshl_b32 s29, s16, 2"); b("s_add_u32 s29, s29, s18"); b("s_mul_i32 s29, s29, 114688")
        b("s_mul_i32 s30, s17, 7168"); b("s_add_u32 s29, s29, s30"); b(f"s_add_u32 s29, s29, {WS_H1:#x}")
        b("s_add_u32 s30, s29, 4096")
        b("s_lshl_b32 s31, s22, 4"); b("s_add_u32 s31, s31, s17"); b("s_lshl_b32 s31, s31, 1"); b("s_add_u32 s31, s31, s23")
        b("s_lshl_b32 s31, s31, 2"); b("s_add_u32 s31, s31, s41")
        b("s_lshl_b32 s44, s19, 2"); b("s_add_u32 s44, s44, s18"); b("s_lshl_b32 s44, s44, 5"); b("s_add_u32 s44, s44, s41")
        b("s_lshl_b32 s45, s16, 1"); b("s_add_u32 s45, s45, s19"); b("s_mul_i32 s45, s45, 229376")
        b("s_mul_i32 s46, s18, 28672"); b("s_add_u32 s45, s45, s46"); b(f"s_add_u32 s45, s45, {WS_H1:#x}")
        b("s_mul_i32 s46, s22, 114688")
        b("v_add_u32 v7, s46, v3")
        b("s_sub_u32 s46, 114688, s46")
        b("v_add_u32 v8, s46, v3")
        b("v_and_b32 v13, 7, v2"); b("v_lshlrev_b32 v13, 2, v13")

    def epi(p, SC, layer):
        out = []
        I = lambda s: out.append(lambda: a(s))
        for rt in range(2):
            C = acc1(2*p, rt); n = 8 if p < 3 else 4
            for i in range(n): I(f"v_max_f32 v{C+i}, 0, v{C+i}")
            for i in range(n): I(f"v_mul_f32 v{C+i}, v{C+i}, v{RI+rt}")
            for i in range(n): I(f"v_mul_f32 v{C+i}, v{C+i}, v{C+i}")
            if p < 3:
                for i in range(4): I(f"v_cvt_pk_bf16_f32 v{C+i}, v{C+i}, v{C+4+i}")
                so, off = ("s29", 2048*p + 256*rt) if p < 2 else ("s30", 256*rt)
                out.append(lambda C=C, so=so, off=off: a.vmem(f"buffer_store_dwordx4 v[{C}:{C+3}], v{VH1}, s[52:55], {so} offen offset:{off} {SC}", f"hs{p}"))
            else:
                I(f"v_cvt_pk_bf16_f32 v{C}, v{C}, v{C+1}"); I(f"v_cvt_pk_bf16_f32 v{C+1}, v{C+2}, v{C+3}")
                out.append(lambda C=C, rt=rt: a.vmem(f"buffer_store_dwordx2 v[{C}:{C+1}], v{VH2}, s[52:55], s30 offen offset:{2048+256*rt} {SC}", f"hs{p}"))
        return out
    def flagH(p, SCF, layer):
        r = 61 + (p & 1)
        return [lambda: a(f"v_mov_b32 v{r}, {p+1}"), lambda: a.wait_vm(f"hs{p}"),
                lambda: a.vmem(f"buffer_store_dword v{r}, v9, s[52:55], s31 offen offset:{256*layer} {SCF}", "fl")]
    def fcheck_issue(layer, tag):
        return lambda: a.vmem(f"buffer_load_dword v14, v13, s[52:55], s44 offen offset:{256*layer} sc1", tag)
    def fcheck(layer, tag, stage):
        def f():
            a.wait_vm(tag)
            L = a.newlabel("FOK")
            a(f"v_cmp_gt_u32 vcc, {stage}, v14")
            a(f"s_cbranch_vccz {L}")
            poll(a, "v13", "s44", f"v_cmp_gt_u32 vcc, {stage}, v14", off=256*layer)
            a.label(L)
        return f
    def hload(n):
        stage, ks = korder[n >> 1]; t = n & 1; r = hslot(n)
        def f():
            if t == 0: a(f"s_add_u32 s46, s45, {(ks >> 2) * 4096}")
            a.vmem(f"buffer_load_dwordx4 v[{r}:{r+3}], v{7+t}, s[52:55], s46 offen offset:{1024*(ks&3)} sc1", f"H{n}")
        return f

    def g1(layer, SC, SCF, pre1):
        seq = [(s, ft) for s in range(16) for ft in range(4)] + [(s, ft) for s in range(16) for ft in (4, 5)] + [(s, 6) for s in range(16)]
        def wread(n):
            off = 1024*n
            base = "v3" if off < 57344 else "v6"
            if off >= 57344: off -= 57344
            r = WR + 4*(n % NW)
            a.lds(f"ds_read_b128 v[{r}:{r+3}], {base} offset:{off}", f"W{n}")
        def fold(ft, rt):
            C = acc1(ft, rt)
            a(f"v_mfma_f32_16x16x16_bf16 v[{C}:{C+3}], a[{WX+2*ft}:{WX+2*ft+1}], v[{AX+2*rt}:{AX+2*rt+1}], v[{C}:{C+3}]")
        for n in range(NW - 1): wread(n)
        F = Fill()
        started = set()
        def step(n, budget):
            s, ft = seq[n]; r = WR + 4*(n % NW)
            for rt in range(2):
                if rt == 0: a.wait_lg(f"W{n}")
                if layer == 1 and n < 64 and ft == 0: a.wait_vm(f"A{s}_{rt}")
                C = acc1(ft, rt); B = AF + 8*s + 4*rt
                src = f"v[{C}:{C+3}]" if (ft, rt) in started else "0"
                started.add((ft, rt))
                a(f"v_mfma_f32_16x16x32_bf16 v[{C}:{C+3}], v[{r}:{r+3}], v[{B}:{B+3}], {src}")
                if rt == 0 and n + NW - 1 < len(seq): wread(n + NW - 1)
                F.emit(budget[rt])
        for s in range(16):
            F.ext(pre1[s])
            k = (len(F.q) + 6) // 7
            for ft in range(4): step(4*s + ft, (k, k) if ft < 3 else (k, 99))
            if layer == 0:
                for rt in range(2):
                    B = AF + 8*s + 4*rt
                    for (C, A) in ((SUM + 4*rt, ONES), (SS + 4*rt, B)):
                        src = "0" if s == 0 else f"v[{C}:{C+3}]"
                        a(f"v_mfma_f32_16x16x32_bf16 v[{C}:{C+3}], v[{A}:{A+3}], v[{B}:{B+3}], {src}")
        stamp(a, 6 if layer == 0 else 13)
        if layer == 0: F.ext([lambda: a.nop(2)] + thunks(a, stats0))
        F.ext(thunks(a, haddr))
        F.add(lambda: a.nop(1))
        for ft in range(4):
            for rt in range(2): F.add(lambda ft=ft, rt=rt: fold(ft, rt))
        F.add(lambda: a.nop(2))
        F.ext(epi(0, SC, layer)); F.ext(epi(1, SC, layer)); F.ext(flagH(0, SCF, layer))
        mark = len(F.q)
        for n in range(64, 96): step(n, (1, 2) if layer else (2, 2))
        F.flush()
        for ft in (4, 5):
            for rt in range(2): fold(ft, rt)
        F.add(fcheck_issue(layer, "fc1"))
        F.ext(flagH(1, SCF, layer))
        F.add(lambda: a.nop(2))
        e2 = epi(2, SC, layer)
        F.ext(e2[:len(e2)//2])
        F.add(fcheck(layer, "fc1", 1))
        rest = e2[len(e2)//2:]
        for n in range(8):
            F.add(hload(n)); F.ext(rest[:4]); rest = rest[4:]
        F.ext(rest)
        for n in range(96, 112): step(n, (2, 3))
        F.flush()
        for rt in range(2): fold(6, rt)
        stamp(a, 7 if layer == 0 else 14)

    def g2(layer, SC, SCF, extra):
        F = Fill()
        F.ext(flagH(2, SCF, layer))
        F.add(lambda: a.nop(4))
        F.ext(epi(3, SC, layer))
        F.ext(extra)
        nxt = 8
        def issue_next():
            nonlocal nxt
            if nxt >= 56: return
            stage = korder[nxt >> 1][0]
            if (nxt & 1) == 0 and korder[(nxt >> 1) - 1][0] != stage:
                fcheck(layer, f"fc{stage}", stage)()
            m = nxt + 6
            if m < 56 and (m & 1) == 0 and korder[(m >> 1) - 1][0] != korder[m >> 1][0]:
                fcheck_issue(layer, f"fc{korder[m >> 1][0]}")()
            hload(nxt)(); nxt += 1
        while nxt < G2LOOK: issue_next()
        for n in range(56):
            stage, ks = korder[n >> 1]; t = n & 1; r = hslot(n)
            a.wait_vm(f"H{n}")
            for c in range(2):
                C = ACC2 + 16*(2*t + c); W = (2*ks + c)*4
                src = "0" if n < 2 else f"v[{C}:{C+15}]"
                a(f"v_mfma_f32_32x32x16_bf16 v[{C}:{C+15}], a[{W}:{W+3}], v[{r}:{r+3}], {src}")
                F.emit(3)
            if n == 12: F.q[:0] = flagH(3, SCF, layer)
            issue_next()
        F.flush()
        stamp(a, 8 if layer == 0 else 15)

    XB, YF = 72, 88
    def g2_extra(layer):
        out = []
        I = lambda s: out.append(lambda: a(s))
        for _ in range(12): out.append(lambda: None)
        I("v_lshlrev_b32 v63, 4, v12")
        I("s_lshl_b32 s26, s28, 6")
        for q in range(2):
            out.append(lambda q=q: a.vmem(f"buffer_load_dwordx4 v[{104+4*q}:{107+4*q}], v63, s[60:63], s26 offen offset:{32*q}", "b2"))
        if layer == 0:
            I(f"v_lshlrev_b32 v64, {2+13}, v12")
            I("v_lshl_add_u32 v64, v11, 2, v64")
            I(f"s_mul_i32 s32, s28, {16*PS}")
            for q in range(2):
                for i in range(4):
                    off = (8*q + i) * PS
                    I(f"s_add_u32 s33, s32, {WS_X1P + off:#x}")
                    out.append(lambda q=q, i=i: a.vmem(f"buffer_load_dword a{XM+4*q+i}, v64, s[52:55], s33 offen sc1", "own"))
                    I(f"s_add_u32 s33, s32, {WS_YP + off:#x}")
                    out.append(lambda q=q, i=i: a.vmem(f"buffer_load_dword a{YT+4*q+i}, v64, s[52:55], s33 offen sc1", "own"))
        for k in range(1, 4):
            I(f"s_xor_b32 s26, s18, {k}"); I("s_mul_i32 s26, s26, 12288"); I(f"s_add_u32 s26, s26, {L_RED + (k-1)*4096}")
            I(f"v_add_u32 v{16+k}, s26, v3")
        I("s_mul_i32 s26, s18, 12288"); I(f"s_add_u32 s26, s26, {L_RED}"); I("v_add_u32 v16, s26, v3")
        for _ in range(40): out.append(lambda: None)
        out.append(lambda: a.wait_vm(["b2", "own"] if layer == 0 else ["b2"]))
        for d in range(8):
            I(f"v_accvgpr_read_b32 v20, a{XM+d}")
            I(f"v_lshlrev_b32 v21, 16, v{104+d}"); I(f"v_and_b32 v22, {MASKHI}, v{104+d}")
            I(f"v_lshlrev_b32 v{XB+d}, 16, v20"); I(f"v_and_b32 v{XB+8+d}, {MASKHI}, v20")
            I(f"v_add_f32 v{XB+d}, v{XB+d}, v21"); I(f"v_add_f32 v{XB+8+d}, v{XB+8+d}, v22")
        if layer == 0:
            for d in range(8):
                I(f"v_accvgpr_read_b32 v20, a{YT+d}")
                I(f"v_lshlrev_b32 v{YF+d}, 16, v20"); I(f"v_and_b32 v{YF+8+d}, {MASKHI}, v20")
            I("v_lshlrev_b32 v38, 3, v10"); I(f"v_mov_b32 v36, {OOB}"); I("v_cmp_eq_u32 s[36:37], 0, v12")
            I(f"s_mul_i32 s47, s28, {STS}"); I(f"v_lshlrev_b32 v37, 17, v12")
            I("v_cndmask_b32 v36, v36, v38, s[36:37]"); I("v_add_u32 v38, v37, v38")
            I("v_lshrrev_b32 v35, 4, v10"); I("v_lshlrev_b32 v35, 14, v35"); I("v_lshl_add_u32 v35, v12, 8, v35"); I("v_lshl_add_u32 v35, v4, 4, v35")
            I("s_lshl_b32 s32, s19, 1"); I("s_add_u32 s32, s32, s22"); I("s_lshl_b32 s32, s32, 4"); I("s_add_u32 s32, s32, s28")
            I("s_lshl_b32 s32, s32, 2"); I("s_add_u32 s33, s32, s41")
            I("v_mov_b32 v39, 1")
        else:
            I("v_lshlrev_b32 v35, 10, v11"); I("v_lshl_add_u32 v35, v12, 4, v35")
        return out

    def sums(X, o):
        a(f"v_pk_add_f32 {pk(o+2)}, {pk(X)}, {pk(X+2)}"); a(f"v_pk_mul_f32 {pk(o+4)}, {pk(X)}, {pk(X)}")
        a(f"v_pk_fma_f32 {pk(o+4)}, {pk(X+2)}, {pk(X+2)}, {pk(o+4)}")
        for i in range(4, 16, 2):
            a(f"v_pk_add_f32 {pk(o+2)}, {pk(o+2)}, {pk(X+i)}"); a(f"v_pk_fma_f32 {pk(o+4)}, {pk(X+i)}, {pk(X+i)}, {pk(o+4)}")
        a(f"v_add_f32 v{o}, v{o+2}, v{o+3}"); a(f"v_add_f32 v{o+1}, v{o+4}, v{o+5}")
        half_sum(a, [o, o+1], [o+2, o+3])
        a(f"v_and_b32 v{o+1}, 0x7fffffff, v{o+1}")

    def tail(layer, SC, SCF):
        a.nop(10)
        for k in range(1, 4):
            for r4 in range(4):
                C = ACC2 + 16*k + 4*r4
                a.lds(f"ds_write_b128 v{16+k}, v[{C}:{C+3}] offset:{1024*r4}", "rw")
        for i in range(0, 16, 2): a(f"v_pk_add_f32 {pk(ACC2+i)}, {pk(ACC2+i)}, {pk(XB+i)}")
        a.wait_lg0()
        a("s_barrier")
        RD = 192
        for k in range(3):
            for r4 in range(4):
                r = RD + 16*k + 4*r4
                a.lds(f"ds_read_b128 v[{r}:{r+3}], v16 offset:{4096*k+1024*r4}", f"rr{k}")
        for k in range(3):
            a.wait_lg(f"rr{k}")
            for i in range(0, 16, 2): a(f"v_pk_add_f32 {pk(ACC2+i)}, {pk(ACC2+i)}, {pk(RD+16*k+i)}")
        P = 24; X2 = ACC2
        if layer == 1:
            a("s_lshl_b32 s26, s28, 6")
            for q in range(2):
                for i in range(4): a(f"v_cvt_pk_bf16_f32 v{P+4*q+i}, v{X2+4*q+i}, v{X2+8+4*q+i}")
                a.vmem(f"buffer_store_dwordx4 v[{P+4*q}:{P+4*q+3}], v35, s[56:59], s26 offen offset:{32*q}", "out")
            stamp(a, 16)
            return
        stamp(a, 9)
        sums(X2, 40)
        a(f"s_add_u32 s26, s47, {WS_ST:#x}")
        a.vmem(f"buffer_store_dwordx2 v[40:41], v36, s[52:55], s26 offen {SC}", "st")
        SD = 192
        L = a.newlabel("SPOLL"); E = a.newlabel("SPOLLX")
        a(f"s_mov_b32 s40, {SPIN_MAX}")
        a.label(L)
        for b in range(8):
            a(f"s_mov_b32 s26, {WS_ST + b*STS:#x}")
            a(f"buffer_load_dwordx2 {pk(SD+2*b)}, v38, s[52:55], s26 offen sc1")
        a("s_sub_u32 s40, s40, 1")
        a("s_cbranch_scc1 " + E)
        a("s_waitcnt vmcnt(0)")
        a(f"v_or3_b32 v42, v{SD+1}, v{SD+3}, v{SD+5}"); a(f"v_or3_b32 v43, v{SD+7}, v{SD+9}, v{SD+11}")
        a(f"v_or3_b32 v42, v42, v{SD+13}, v{SD+15}"); a("v_or_b32 v42, v42, v43")
        a("v_cmp_gt_i32 vcc, 0, v42")
        a("s_cbranch_vccnz " + L)
        a.label(E)
        a.wait_vm0()
        stamp(a, 10)
        for h in (8, 4, 2):
            for i in range(0, h, 2): a(f"v_pk_add_f32 {pk(SD+i)}, {pk(SD+i)}, {pk(SD+h+i)}")
        half_sum(a, [SD, SD+1], [SD+2, SD+3])
        a(f"v_mul_f32 v40, 0x3b000000, v{SD}"); a(f"v_mul_f32 v42, 0x3b000000, v{SD+1}")
        a("v_fma_f32 v42, -v40, v40, v42"); a("v_max_f32 v42, 0, v42")
        ln_scalars(a, [40], [42], 44)
        a("v_mul_f32 v40, -v40, v42")
        a("s_lshl_b32 s26, s28, 10"); a(f"s_add_u32 s26, s26, {WS_X3U:#x}")
        for i in range(0, 16, 2):
            a(f"v_pk_fma_f32 {pk(SD+i)}, {pk(X2+i)}, v[42:43], v[40:41] op_sel_hi:[1,0,0]")
        for i in range(0, 16, 2):
            a(f"v_pk_fma_f32 {pk(X2+i)}, {pk(SD+i)}, {pk(YF+i)}, {pk(X2+i)}")
        for q in range(2):
            for i in range(4): a(f"v_cvt_pk_bf16_f32 v{P+4*q+i}, v{X2+4*q+i}, v{X2+8+4*q+i}")
            a.vmem(f"buffer_store_dwordx4 v[{P+4*q}:{P+4*q+3}], v35, s[52:55], s26 offen offset:{512*q} {SC}", "xs")
        for d in range(8):
            unpack_lo(a, X2+d, P+d); unpack_hi(a, X2+8+d, P+d)
        sums(X2, 40)
        a(f"s_add_u32 s26, s47, {WS_ST2:#x}")
        a.vmem(f"buffer_store_dwordx2 v[40:41], v36, s[52:55], s26 offen {SC}", "xs")
        for d in range(8): a(f"v_accvgpr_write_b32 a{XM+d}, v{P+d}")
        a("s_lshl_b32 s26, s18, 6"); a("s_add_u32 s26, s26, s41")
        a("s_lshl_b32 s32, s16, 2"); a("s_add_u32 s32, s32, s18"); a("s_lshl_b32 s47, s32, 8"); a("s_lshl_b32 s32, s32, 15")
        a(f"s_add_u32 s32, s32, {WS_X3U:#x}"); a(f"s_add_u32 s47, s47, {WS_ST2:#x}")
        a("v_add_u32 v7, 16384, v3")
        a("v_lshlrev_b32 v8, 16, v5"); a("v_lshl_add_u32 v8, v4, 3, v8")
        a("v_lshlrev_b32 v13, 2, v4")
        a.wait_vm0()
        a.vmem(f"buffer_store_dword v39, v9, s[52:55], s33 offen offset:512 {SCF}", "fl")
        stamp(a, 11)

    for mode in ("FAST", "SLOW"):
        SCF = "" if mode == "FAST" else "sc0 sc1"
        SC = SCF
        if mode == "SLOW":
            a.label("K12_SLOW")
            a.vm, a.lg = list(state[0]), list(state[1]); w2l[:] = list(state[2])
        issue_vm(w2l, 4)
        a.wait_vm("so")
        a.vmem(f"buffer_store_dword v17, v9, s[52:55], s26 offen {SCF}", "fl")
        stamp(a, 4)
        NL = a.newlabel("NOLEAD")
        a("s_cmp_ge_u32 s27, 4"); a(f"s_cbranch_scc1 {NL}")
        a("s_cmp_lg_u32 s18, 1"); a(f"s_cbranch_scc1 {NL}")
        a("s_lshl_b32 s26, s21, 2"); a("s_add_u32 s26, s26, s27"); a("s_lshl_b32 s26, s26, 7"); a(f"s_add_u32 s26, s26, {WS_FLAG + FL_LF:#x}")
        poll(a, "v13", "s26", "v_cmp_eq_u32 vcc, 0, v14")
        a("v_lshlrev_b32 v14, 10, v2"); a("v_cmp_gt_u32 vcc, 4, v2"); a(f"v_mov_b32 v18, {OOB}")
        a("s_lshl_b32 s26, s27, 12"); a("s_lshl_b32 s29, s21, 2"); a("s_add_u32 s26, s26, s29")
        a(f"s_add_u32 s26, s26, {WS_FLAG + FL_GF:#x}")
        a("v_cndmask_b32 v14, v18, v14, vcc")
        a("buffer_store_dword v17, v14, s[52:55], s26 offen sc0 sc1")
        a.label(NL)
        CP, BB = 128, 223
        a("v_lshlrev_b32 v18, 6, v4"); a("v_lshl_add_u32 v18, v5, 4, v18")
        a("s_mul_i32 s26, s17, 7168"); a(f"s_add_u32 s26, s26, {WS_C1P:#x}"); a("s_add_u32 s29, s26, 4096")
        for ft in range(7):
            a.vmem(f"buffer_load_dwordx4 v[{CP+4*ft}:{CP+4*ft+3}], v18, s[52:55], {'s26' if ft < 4 else 's29'} offen offset:{1024*(ft&3)}", "cp")
        for f in w2l: f()
        w2l[:] = []
        a.wait_vm("cp")
        for ft in range(7):
            r = CP + 4*ft
            a(f"v_pk_add_f32 {pk(r)}, {pk(r)}, {pk(r+2)}")
        for ft in range(7): a(f"v_add_f32 v{CP+4*ft}, v{CP+4*ft}, v{CP+4*ft+1}")
        quad_sum(a, [CP+4*ft for ft in range(7)], [CP+4*ft+1 for ft in range(7)])
        for ft in range(7):
            r = CP + 4*ft
            a(f"v_cvt_pk_bf16_f32 v{r+1}, v{r}, v{r}"); a(f"v_and_b32 v{r+2}, {MASKHI}, v{r+1}"); a(f"v_sub_f32 v{r}, v{r}, v{r+2}")
            a(f"v_cvt_pk_bf16_f32 v{r+1}, v{r+2}, v{r}")
            a(f"v_and_b32 v{r+2}, {MASKHI}, v{r+1}"); a(f"v_sub_f32 v{r}, v{r}, v{r+2}")
            if ft < 6 and ft & 1: a(f"v_and_b32 v{r+3}, {MASKHI}, v{BB+(ft>>1)}")
            else: a(f"v_lshlrev_b32 v{r+3}, 16, v{BB+(ft>>1)}")
            a(f"v_cvt_pk_bf16_f32 v{r+2}, v{r}, v{r+3}")
            a(f"v_accvgpr_write_b32 a{WX+2*ft}, v{r+1}"); a(f"v_accvgpr_write_b32 a{WX+2*ft+1}, v{r+2}")
        for d in range(4): a(f"v_mov_b32 v{ONES+d}, 0x3f803f80")
        a("v_lshlrev_b32 v7, 15, v5"); a("v_lshl_add_u32 v7, v4, 3, v7")
        a("s_lshl_b32 s26, s16, 9"); a("s_lshl_b32 s29, s18, 7"); a("s_add_u32 s26, s26, s29")
        a("v_add_u32 v7, s26, v7"); a(f"v_add_u32 v8, {PS}, v7")
        NP = a.newlabel("NOPOLL")
        a("v_and_b32 v13, 7, v2"); a("v_lshlrev_b32 v13, 2, v13")
        a("s_cmp_lg_u32 s18, 0"); a(f"s_cbranch_scc1 {NP}")
        poll(a, "v13", "s41", "v_cmp_eq_u32 vcc, 0, v14", off=FL_GF)
        a.label(NP)
        a.wait_vm("w1")
        a("s_barrier")
        stamp(a, 5)
        def a0_loads(s):
            Fr = AF + 8*s
            return [lambda: a(f"s_mov_b32 s26, {WS_X1P + 16*s*PS:#x}"),
                    lambda: a.vmem(f"buffer_load_dwordx2 {pk(Fr)}, v7, s[52:55], s26 offen sc1", f"A{s}"),
                    lambda: a.vmem(f"buffer_load_dwordx2 {pk(Fr+4)}, v8, s[52:55], s26 offen sc1", f"A{s}"),
                    lambda: a(f"s_mov_b32 s26, {WS_X1P + (16*s+2)*PS:#x}"),
                    lambda: a.vmem(f"buffer_load_dwordx2 {pk(Fr+2)}, v7, s[52:55], s26 offen sc1", f"A{s}"),
                    lambda: a.vmem(f"buffer_load_dwordx2 {pk(Fr+6)}, v8, s[52:55], s26 offen sc1", f"A{s}")]
        def a0_fix(s):
            Fr = AF + 8*s
            return [lambda: a.wait_vm(f"A{s}"), lambda: a(f"v_swap_b32 v{Fr+1}, v{Fr+4}"), lambda: a(f"v_swap_b32 v{Fr+3}, v{Fr+6}")]
        for s in range(A0LOOK):
            for f in a0_loads(s): f()
        pre = [[] for _ in range(16)]
        for s in range(16):
            if s + A0LOOK < 16: pre[s] += a0_loads(s + A0LOOK)
            if s + 1 < 16: pre[s] += a0_fix(s + 1)
        for f in a0_fix(0): f()
        SCH0 = SC if (PRETOUCH or mode == "SLOW") else "sc0 sc1"
        g1(0, SCH0, SCF, pre)
        g2(0, SCH0, SCF, g2_extra(0))
        tail(0, SC, SCF)
        poll(a, "v13", "s26", "v_cmp_eq_u32 vcc, 0, v14", off=512)
        a.vm = []
        stamp(a, 12)
        al = []
        for s in range(16):
            for rt in range(2):
                r = AF + 8*s + 4*rt
                g_ = [lambda r=r, rt=rt, s=s: a.vmem(f"buffer_load_dwordx4 v[{r}:{r+3}], {('v3','v7')[rt]}, s[52:55], s32 offen offset:{1024*(s&3)} sc1", f"A{s}_{rt}")]
                if (s & 3) == 3 and rt == 1: g_.append(lambda: a("s_add_u32 s32, s32, 4096"))
                al.append(g_)
        for g_ in al[:G1LOOK]:
            for f in g_: f()
        al = al[G1LOOK:]
        pre = [[] for _ in range(16)]
        for s in range(16):
            for g_ in al[2*s:2*s+2]: pre[s] += g_
        sl = []
        for k in range(4):
            for rt in range(2):
                r = SD1 + 8*rt + 2*k
                sl.append(lambda r=r, rt=rt: a.vmem(f"buffer_load_dwordx2 {pk(r)}, v8, s[52:55], s47 offen offset:{128*rt} sc1", "sd1"))
            sl.append(lambda: a(f"s_add_u32 s47, s47, {STS}"))
        for i in range(4): pre[2+i] += sl[3*i:3*i+3]
        sf = [lambda: a.wait_vm("sd1")] + thunks(a, stats1)
        per = (len(sf) + 6) // 7
        for i in range(7): pre[9+i] += sf[per*i: per*(i+1)]
        g1(1, SC, SCF, pre)
        g2(1, SC, SCF, g2_extra(1))
        tail(1, SC, SCF)
        stamp_flush(a, 2, 17, 15, 2, 13, "s18")
        a("s_endpgm")
        if mode == "FAST": a.label("K12_FAST_END")
    a.label("K12_END")
    a("s_endpgm")
    return a.text()
```

```python
import sys
from g2common import *
from g2k0 import gen_k0
from g2k12 import gen_k12, STAMP_NAMES
def build(kernels, path):
    out = ["; generated by gen/gen2.py (hand-written generator)"]
    for (label, text, vgpr, accum, lds, block) in kernels:
        out.append(f"; @launch kernel={label} grid=(256,1,1) block=({block},1,1) lds={lds}")
    out.append('.amdgcn_target "amdgcn-amd-amdhsa--gfx950"')
    out.append(".text")
    for (label, text, vgpr, accum, lds, block) in kernels: out.append(kernel_header(label) + text)
    out.append('.section .rodata,"a"')
    for (label, text, vgpr, accum, lds, block) in kernels:
        out.append(".p2align 6"); out.append(kernel_desc(label, vgpr, accum))
    open(path, "w").write("\n".join(out) + "\n")
if __name__ == "__main__":
    path = sys.argv[1]
    build([("k0_kernel", gen_k0(), 120, 120, 0, 512), ("k12_kernel", gen_k12(), 512, 256, 163840, 256)], path)
```

```python
from g2common import *
SC1 = "sc0 sc1"
EXACT = env("EXACT", 1)
K0SC = os.environ.get("K0SC", SC1)

def gen_k0():
    a = Asm()
    a("s_cmp_ge_u32 s2, 256")
    a("s_cbranch_scc1 K0_END")
    a.sload(f"s_load_dwordx4 s[4:7], s[0:1], {KA_Q}")
    a.sload(f"s_load_dwordx4 s[8:11], s[0:1], {KA_V}")
    a.sload(f"s_load_dwordx2 s[12:13], s[0:1], {KA_W1}")
    a.sload(f"s_load_dwordx2 s[14:15], s[0:1], {KA_WS}")
    a.sload(f"s_load_dwordx2 s[60:61], s[0:1], {KA_W2}")
    a("v_lshrrev_b32 v1, 6, v0")
    a("v_and_b32 v2, 63, v0")
    a("s_and_b32 s16, s2, 7")
    a("v_readfirstlane_b32 s18, v1")
    a("s_lshr_b32 s17, s2, 3")
    a(f"v_mov_b32 v14, {OOB}")
    if STAMPS: a("v_mov_b32 v15, 0")
    a("s_cmp_ge_u32 s18, 4")
    a("s_cbranch_scc1 K0_AUX")
    a("v_and_b32 v3, 7, v2")
    a("v_lshrrev_b32 v4, 3, v2")
    a("s_lshr_b32 s19, s18, 1")
    a("s_and_b32 s20, s18, 1")
    a("s_lshl_b32 s21, s17, 1"); a("s_add_u32 s21, s21, s19"); a("s_lshl_b32 s21, s21, 5")
    a("s_lshl_b32 s22, s16, 1"); a("s_add_u32 s22, s22, s20")
    a("v_lshlrev_b32 v5, 12, v3")
    a("v_lshl_add_u32 v5, v4, 3, v5")
    a("s_lshl_b32 s23, s21, 10"); a("s_lshl_b32 s24, s22, 6"); a("s_add_u32 s23, s23, s24")
    a("v_add_u32 v5, s23, v5")
    a("v_subrev_u32 v6, 0xc00, v5")
    a("v_lshlrev_b32 v7, 5, v4")
    a("s_lshl_b32 s24, s22, 8")
    a(f"v_mul_u32_u24 v8, {2*PS}, v4")
    a("v_lshl_add_u32 v8, v3, 4, v8")
    a(f"s_mul_i32 s25, s22, {16*PS}"); a("s_lshl_b32 s26, s21, 2"); a("s_add_u32 s25, s25, s26")
    a("v_add_u32 v8, s25, v8")
    a(f"v_add_u32 v9, {PS}, v8")
    a.wait_lg0()
    stamp(a, 0)
    a.srd(36, 6, 0x200000)
    a.srd(40, 8, 0x200000)
    a.srd(44, 10, 4096)
    K, V, Q, SK = 16, 32, 40, 48
    def ro(r): return ("v6", (r+3)*1024) if r < 0 else ("v5", r*1024)
    for r in range(-3, 4):
        vo, off = ro(r)
        a.vmem(f"buffer_load_dwordx2 {pk(K+2*(r+3))}, {vo}, s[36:39], 0 offen offset:{off}", f"k{r}")
        if r >= 0: a.vmem(f"buffer_load_dwordx2 {pk(V+2*r)}, {vo}, s[40:43], 0 offen offset:{off}", f"v{r}")
        if r == -3:
            a.vmem(f"buffer_load_dwordx4 v[{SK}:{SK+3}], v7, s[44:47], s24 offen", "sk")
            a.vmem(f"buffer_load_dwordx4 v[{SK+4}:{SK+7}], v7, s[44:47], s24 offen offset:16", "sk")
    a.srd(32, 4, 0x200000)
    a.srd(52, 14, WS_SIZE)
    for r, d in enumerate((0, 4, 2, 6)):
        a.vmem(f"buffer_load_dwordx2 {pk(Q+d)}, v5, s[32:35], 0 offen offset:{r*1024}", "q")
    C = 56
    a.wait_vm("sk")
    for pi in range(2):
        for tap in range(4):
            f = unpack_lo if tap % 2 == 0 else unpack_hi
            f(a, C + 8*pi + 2*tap, SK + 4*pi + tap//2)
            f(a, C + 8*pi + 2*tap + 1, SK + 4*pi + 2 + tap//2)
    KF = 72
    def kf(r, pi): return KF + 4*(r+3) + 2*pi
    U = 100
    T0, T1 = 108, 112
    for r in range(-3, 4):
        a.wait_vm(f"k{r}")
        for pi in range(2):
            unpack_lo(a, kf(r, pi), K+2*(r+3)+pi); unpack_hi(a, kf(r, pi)+1, K+2*(r+3)+pi)
        if r < 0: continue
        def rnd(R):
            for pi in range(2): a(f"v_cvt_pk_bf16_f32 v{116+pi}, v{R+2*pi}, v{R+2*pi+1}")
            for pi in range(2): unpack_lo(a, R+2*pi, 116+pi); unpack_hi(a, R+2*pi+1, 116+pi)
        for pi in range(2): a(f"v_pk_mul_f32 {pk(T0+2*pi)}, {pk(kf(r-3,pi))}, {pk(C+8*pi+6)}")
        if EXACT: rnd(T0)
        for tap in (2, 1, 0):
            if EXACT:
                for pi in range(2): a(f"v_pk_mul_f32 {pk(T1+2*pi)}, {pk(kf(r-tap,pi))}, {pk(C+8*pi+2*tap)}")
                rnd(T1)
                for pi in range(2): a(f"v_pk_add_f32 {pk(T0+2*pi)}, {pk(T0+2*pi)}, {pk(T1+2*pi)}")
                rnd(T0)
            else:
                for pi in range(2): a(f"v_pk_fma_f32 {pk(T0+2*pi)}, {pk(kf(r-tap,pi))}, {pk(C+8*pi+2*tap)}, {pk(T0+2*pi)}")
        a.wait_vm(f"v{r}")
        for pi in range(2):
            unpack_lo(a, T1+2*pi, V+2*r+pi); unpack_hi(a, T1+2*pi+1, V+2*r+pi)
        for pi in range(2): a(f"v_pk_mul_f32 {pk(T0+2*pi)}, {pk(T0+2*pi)}, {pk(T1+2*pi)}")
        for pi in range(2): a(f"v_cvt_pk_bf16_f32 v{U+4*pi+r}, v{T0+2*pi}, v{T0+2*pi+1}")
    a.vmem(f"buffer_store_dwordx4 v[{U}:{U+3}], v8, s[52:55], 0 offen {K0SC}", "s")
    a.vmem(f"buffer_store_dwordx4 v[{U+4}:{U+7}], v9, s[52:55], 0 offen {K0SC}", "s")
    stamp(a, 1)
    a(f"s_mov_b32 s19, {WS_QP:#x}")
    a.wait_vm("q")
    a(f"v_swap_b32 v{Q+1}, v{Q+4}"); a(f"v_swap_b32 v{Q+3}, v{Q+6}")
    a.vmem(f"buffer_store_dwordx4 v[{Q}:{Q+3}], v8, s[52:55], s19 offen {K0SC}", "s")
    a.vmem(f"buffer_store_dwordx4 v[{Q+4}:{Q+7}], v9, s[52:55], s19 offen {K0SC}", "s")
    stamp(a, 2)
    stamp_flush(a, 0, 3, 15, 2, 13, "s18")
    a.label("K0_END")
    a("s_endpgm")
    a.label("K0_AUX")
    a.vm = []; a.lg = []; a.smem = True
    a("s_sub_u32 s18, s18, 4")
    a("v_and_b32 v3, 15, v2")
    a("v_lshrrev_b32 v4, 4, v2")
    a("s_lshr_b32 s20, s2, 4")
    a("s_and_b32 s21, s2, 15")
    a("s_lshl_b32 s19, s2, 2"); a("s_add_u32 s19, s19, s18")
    a("s_lshl_b32 s22, s19, 11")
    a("v_lshlrev_b32 v5, 4, v2")
    a(f"v_mul_u32_u24 v6, {8*3584}, v4")
    a("v_lshl_add_u32 v6, v3, 2, v6")
    a(f"s_mul_i32 s23, s21, {32*3584}"); a("s_mul_i32 s24, s20, 224"); a("s_add_u32 s23, s23, s24")
    a("s_lshl_b32 s24, s18, 6"); a("s_add_u32 s23, s23, s24")
    a("v_add_u32 v6, s23, v6")
    a("s_cmp_lt_u32 s18, 3")
    a("s_cselect_b32 s25, 16, 8")
    a("v_cmp_gt_u32 vcc, s25, v3")
    a("s_cselect_b32 s26, 64, 8")
    a("s_cselect_b32 s27, 16, 8")
    a("v_cndmask_b32 v6, v14, v6, vcc")
    a("v_cndmask_b32 v7, v14, v5, vcc")
    a("s_lshl_b32 s28, s21, 2"); a("s_lshl_b32 s29, s18, 1"); a("s_add_u32 s28, s28, s29")
    a("s_lshl_b32 s29, s21, 1"); a("s_add_u32 s29, s29, 64")
    a("s_cmp_eq_u32 s18, 2"); a("s_cselect_b32 s28, s29, s28")
    a("s_add_u32 s29, s21, 96")
    a("s_cmp_eq_u32 s18, 3"); a("s_cselect_b32 s28, s29, s28")
    a("s_lshl_b32 s28, s28, 10"); a("s_mul_i32 s29, s20, 114688"); a("s_add_u32 s28, s28, s29")
    a(f"s_add_u32 s28, s28, {WS_W1P:#x}")
    a("s_lshl_b32 s26, s26, 4"); a("s_add_u32 s26, s26, s28")
    a("v_lshlrev_b32 v8, 6, v3")
    a("v_cndmask_b32 v8, v14, v8, vcc")
    a("v_cmp_eq_u32 vcc, 0, v4")
    a("s_mul_i32 s29, s20, 7168"); a("s_lshl_b32 s30, s18, 11"); a("s_add_u32 s29, s29, s30")
    a("s_lshl_b32 s30, s21, 2"); a("s_add_u32 s29, s29, s30"); a(f"s_add_u32 s29, s29, {WS_C1P:#x}")
    a("v_cndmask_b32 v8, v14, v8, vcc")
    a("s_lshl_b32 s27, s27, 6"); a("s_add_u32 s27, s27, s29")
    a("s_cmp_lt_u32 s18, 3")
    a("s_cselect_b32 s30, 13, 10")
    a("s_cselect_b32 s31, 1, 2")
    a("s_cselect_b32 s33, 4, 2")
    a("s_lshl_b32 s31, s31, 10")
    a("v_lshlrev_b32 v9, s30, v4")
    a("v_lshl_add_u32 v9, v3, 2, v9")
    a("s_mul_i32 s32, s20, 112"); a("s_lshl_b32 s34, s18, 5"); a("s_add_u32 s32, s32, s34"); a("s_lshl_b32 s32, s32, 10")
    a("s_lshl_b32 s34, s21, 6"); a("s_add_u32 s32, s32, s34")
    a("v_cmp_gt_u32 vcc, s33, v4")
    a("v_add_u32 v9, s32, v9")
    a("v_lshrrev_b32 v10, 1, v4"); a("v_lshlrev_b32 v10, 11, v10")
    a("v_and_b32 v11, 1, v4"); a("v_lshl_add_u32 v10, v11, 9, v10"); a("v_lshl_add_u32 v10, v3, 4, v10")
    a("v_cndmask_b32 v9, v14, v9, vcc")
    a("v_cndmask_b32 v10, v14, v10, vcc")
    a("s_lshr_b32 s32, s21, 1"); a("s_mul_i32 s32, s32, 229376")
    a("s_and_b32 s34, s21, 1"); a("s_lshl_b32 s34, s34, 10"); a("s_add_u32 s32, s32, s34")
    a("s_mul_i32 s34, s20, 14336"); a("s_add_u32 s32, s32, s34")
    a("s_lshl_b32 s34, s18, 12"); a("s_add_u32 s32, s32, s34")
    a(f"s_add_u32 s32, s32, {WS_W2P:#x}")
    a.wait_lg0()
    stamp(a, 0)
    a.srd(36, 4, 0x200000)
    a.srd(40, 12, 512*3584)
    a.srd(44, 60, 1792*1024)
    a.srd(52, 14, WS_SIZE)
    QS, W1R, W2R = 16, 24, 32
    a.vmem(f"buffer_load_dwordx4 v[{QS}:{QS+3}], v5, s[36:39], s22 offen", "qs")
    a.vmem(f"buffer_load_dwordx4 v[{QS+4}:{QS+7}], v5, s[36:39], s22 offen offset:1024", "qs")
    a("s_mov_b32 s34, 0")
    for e in range(8):
        a.vmem(f"buffer_load_dword v{W1R+e}, v6, s[40:43], s34 offen", "w1")
        if e < 7: a("s_add_u32 s34, s34, 3584")
    a("s_mov_b32 s34, 0")
    for e in range(8):
        a.vmem(f"buffer_load_dword v{W2R+e}, v9, s[44:47], s34 offen", "w2")
        if e < 7: a("s_add_u32 s34, s34, s31")
    a("v_mov_b32 v40, -1"); a("v_mov_b32 v41, -1")
    for d in range(4): a(f"v_mov_b32 v{44+d}, 0")
    a("v_lshlrev_b32 v42, 3, v2")
    a("s_lshl_b32 s34, s19, 9"); a(f"s_add_u32 s34, s34, {WS_ST:#x}")
    a.vmem(f"buffer_store_dwordx2 v[40:41], v42, s[52:55], s34 offen", "s")
    a("v_lshlrev_b32 v43, 2, v2"); a("v_lshrrev_b32 v48, 5, v2"); a("v_lshl_add_u32 v43, v48, 30, v43")
    a("s_lshl_b32 s34, s19, 7"); a(f"s_add_u32 s34, s34, {WS_RS:#x}")
    a.vmem(f"buffer_store_dword v44, v43, s[52:55], s34 offen", "s")
    if env("HPREW", 0):
        a("s_mul_i32 s34, s19, 7168"); a(f"s_add_u32 s34, s34, {WS_H1:#x}")
        for n in range(7):
            a.vmem(f"buffer_store_dwordx4 v[44:47], v5, s[52:55], s34 offen offset:{1024*(n&3)} {os.environ.get('HPSC','sc0 sc1')}", "s")
            if n == 3: a("s_add_u32 s34, s34, 4096")
    a(f"s_cmp_ge_u32 s19, {FLAG_BYTES//1024}")
    a("s_cbranch_scc1 K0_NOFL")
    a("s_lshl_b32 s34, s19, 10"); a(f"s_add_u32 s34, s34, {WS_FLAG:#x}")
    a(f"buffer_store_dwordx4 v[44:47], v5, s[52:55], s34 offen")
    a(f"s_load_dwordx2 s[64:65], s[0:1], {KA_B1}"); a(f"s_load_dwordx2 s[68:69], s[0:1], {KA_B2}"); a(f"s_load_dwordx2 s[76:77], s[0:1], {KA_D}")
    a("v_lshlrev_b32 v52, 6, v2")
    a("s_waitcnt lgkmcnt(0)")
    a.srd(64, 64, 3584); a.srd(68, 68, 1024); a.srd(76, 76, 1024)
    a("buffer_load_dword v53, v52, s[64:67], 0 offen"); a("buffer_load_dword v54, v52, s[68:71], 0 offen"); a("buffer_load_dword v55, v52, s[76:79], 0 offen")
    a.label("K0_NOFL")
    a("s_cmp_ge_u32 s19, 64"); a("s_cbranch_scc1 K0_NOTLB")
    a(f"s_load_dwordx2 s[80:81], s[0:1], {KA_OUT}")
    a("v_lshlrev_b32 v52, 19, v2"); a("s_lshl_b32 s34, s19, 7")
    a("buffer_load_dword v104, v52, s[52:55], s34 offen")
    a("s_waitcnt lgkmcnt(0)")
    a.srd(80, 80, 0x200000)
    a("buffer_load_dword v105, v52, s[80:83], s34 offen")
    a.label("K0_NOTLB")
    if env("CODEPF", 1):
        a("s_getpc_b64 s[56:57]")
        a.label("K0_PC")
        a("s_add_u32 s56, s56, k12_kernel-K0_PC")
        a("s_addc_u32 s57, s57, 0")
        a("s_and_b32 s57, s57, 0xffff")
        a("s_mov_b32 s58, K12_FAST_END-k12_kernel")
        a("s_mov_b32 s59, 0x20000")
        a("s_lshl_b32 s34, s17, 2"); a("s_add_u32 s34, s34, s18"); a("s_lshl_b32 s34, s34, 10")
        a.vmem("buffer_load_dwordx4 v[48:51], v5, s[56:59], s34 offen", "pf")
    X = 56
    a.wait_vm("qs")
    for r in range(2):
        for d in range(4):
            unpack_lo(a, X+8*r+2*d, QS+4*r+d); unpack_hi(a, X+1+8*r+2*d, QS+4*r+d)
    for r in range(2):
        b = X+8*r
        a(f"v_pk_add_f32 {pk(72+2*r)}, {pk(b)}, {pk(b+2)}"); a(f"v_pk_add_f32 {pk(76+2*r)}, {pk(b+4)}, {pk(b+6)}")
    for r in range(2): a(f"v_pk_add_f32 {pk(72+2*r)}, {pk(72+2*r)}, {pk(76+2*r)}")
    for r in range(2): a(f"v_add_f32 v{80+2*r}, v{72+2*r}, v{73+2*r}")
    wave_sum(a, [80, 82], [84, 85])
    for r in range(2): a(f"v_mul_f32 v{80+2*r}, 0x3b000000, v{80+2*r}")
    for r in range(2):
        b = X+8*r
        for e in range(8): a(f"v_sub_f32 v{b+e}, v{b+e}, v{80+2*r}")
        a(f"v_mul_f32 v{81+2*r}, v{b}, v{b}")
        for e in range(1, 8): a(f"v_fmac_f32 v{81+2*r}, v{b+e}, v{b+e}")
    wave_sum(a, [81, 83], [84, 85])
    for r in range(2): a(f"v_mul_f32 v{81+2*r}, 0x3b000000, v{81+2*r}")
    round_bf16_pair(a, 80, 82, 84)
    round_bf16_pair(a, 81, 83, 84)
    for r in range(2): a(f"v_add_f32 v{81+2*r}, 0x3727c5ac, v{81+2*r}")
    round_bf16_pair(a, 81, 83, 84)
    for r in range(2): a(f"v_sqrt_f32 v{81+2*r}, v{81+2*r}")
    a.nop(1)
    round_bf16_pair(a, 81, 83, 84)
    for r in range(2): a(f"v_rcp_f32 v{81+2*r}, v{81+2*r}")
    a("v_cmp_eq_u32 vcc, 0, v2")
    a("s_lshl_b32 s34, s19, 4"); a(f"s_add_u32 s34, s34, {WS_QST:#x}")
    a("v_cndmask_b32 v84, v14, 0, vcc")
    a.vmem("buffer_store_dwordx4 v[80:83], v84, s[52:55], s34 offen", "s")
    stamp(a, 1)
    a("s_mov_b32 s22, 0x05040100"); a("s_mov_b32 s23, 0x07060302")
    a.wait_vm("w1")
    for d in range(4):
        a(f"v_perm_b32 v{88+d}, v{W1R+1+2*d}, v{W1R+2*d}, s22")
        a(f"v_perm_b32 v{92+d}, v{W1R+1+2*d}, v{W1R+2*d}, s23")
    a.vmem(f"buffer_store_dwordx4 v[88:91], v7, s[52:55], s28 offen {K0SC}", "s")
    a.vmem(f"buffer_store_dwordx4 v[92:95], v7, s[52:55], s26 offen {K0SC}", "s")
    a.wait_vm("w2")
    for d in range(4):
        a(f"v_perm_b32 v{96+d}, v{W2R+1+2*d}, v{W2R+2*d}, s22")
        a(f"v_perm_b32 v{100+d}, v{W2R+1+2*d}, v{W2R+2*d}, s23")
    a.vmem(f"buffer_store_dwordx4 v[96:99], v10, s[52:55], s32 offen {K0SC}", "s")
    a.vmem(f"buffer_store_dwordx4 v[100:103], v10, s[52:55], s32 offen offset:256 {K0SC}", "s")
    for e in range(8):
        unpack_lo(a, X+2*e, W1R+e); unpack_hi(a, X+2*e+1, W1R+e)
    for e in range(4): a(f"v_pk_add_f32 {pk(X+2*e)}, {pk(X+2*e)}, {pk(X+8+2*e)}")
    for e in range(2): a(f"v_pk_add_f32 {pk(X+2*e)}, {pk(X+2*e)}, {pk(X+4+2*e)}")
    a(f"v_pk_add_f32 {pk(X)}, {pk(X)}, {pk(X+2)}")
    quad_sum(a, [X, X+1], [X+2, X+3])
    a.vmem(f"buffer_store_dword v{X}, v8, s[52:55], s29 offen", "s")
    a.vmem(f"buffer_store_dword v{X+1}, v8, s[52:55], s27 offen", "s")
    stamp(a, 2)
    stamp_flush(a, 1, 3, 15, 2, 13, "s18")
    a("s_endpgm")
    return a.text()
```

```python
from g2common import *
L_RED = 114688
L_UR = [0x0000, 0x1200]
L_HE = [0x2400, 0x2400 + 8320]
L_HO = [0x2400 + 4160, 0x2400 + 12480]
G2LOOK = env("G2LOOK", 11)
G2B0 = env("G2B0", 6)
G2B1 = env("G2B1", 5)
G1LOOK = env("G1LOOK", 4)
APACE = env("APACE", 4)
A0LOOK = env("A0LOOK", 5)
NW1PRE = env("NW1PRE", 2)
CONVPACE = env("CONVPACE", 5)
W2HAND = env("W2HAND", 56)
EXACT = env("EXACT", 1)
PRETOUCH = env("PRETOUCH", 0)
FORCE_SLOW = env("FORCE_SLOW", 0)
STAMP_NAMES = ["start","lds","conv","cst","cfl","go","g1a","ep0","polH","g2a0","g2a1","sB","polX","g1b0","g1b1","g2b0","g2b1","out","end","x0","x28","x56","x84","x111","y0","y28","y56","y84","y111"]

def poll(a, voff, soff, cmp_, reg=14, off=0):
    L = a.newlabel("POLL"); E = a.newlabel("POLLX")
    a(f"s_mov_b32 s40, {SPIN_MAX}")
    a.label(L)
    a(f"buffer_load_dword v{reg}, {voff}, s[52:55], {soff} offen offset:{off} sc1")
    a("s_sub_u32 s40, s40, 1")
    a("s_cbranch_scc1 " + E)
    a("s_waitcnt vmcnt(0)")
    a(cmp_)
    a("s_cbranch_vccnz " + L)
    a.label(E)
    a("s_waitcnt vmcnt(0)")

def ln_scalars(a, mean, var, tmp, keep_s=None):
    for i, (m, v) in enumerate(zip(mean, var)):
        round_bf16_pair(a, m, v, tmp)
        a(f"v_add_f32 v{v}, 0x3727c5ac, v{v}")
        a(f"v_cvt_pk_bf16_f32 v{tmp}, v{v}, v{v}")
        unpack_lo(a, v, tmp)
        a(f"v_sqrt_f32 v{v}, v{v}")
        a.nop(1)
        a(f"v_cvt_pk_bf16_f32 v{tmp}, v{v}, v{v}")
        s = keep_s[i] if keep_s else v
        unpack_lo(a, s, tmp)
        a(f"v_rcp_f32 v{v}, v{s}")
        a.nop(1)


class MF:
    def __init__(self, f): self.f = f
    def __call__(self): self.f()
class Skip:
    def __init__(self, n): self.n = n
    def __call__(self): pass
def fill_gap(a, F, n, cap):
    while F.q and n > 0:
        it = F.q[0]
        if isinstance(it, Skip):
            it.n -= 1
            if it.n <= 0: F.q.pop(0)
            return
        F.q.pop(0)
        k = len(a.lines); it()
        if isinstance(it, MF): n = cap
        else: n -= sum(1 for l in a.lines[k:] if l.startswith("    "))

def gen_k12():
    a = Asm()
    XM, YT, WX = 224, 232, 240
    a("s_cmp_ge_u32 s2, 256")
    a("s_cbranch_scc1 K12_END")
    a.sload(f"s_load_dwordx4 s[4:7], s[0:1], {KA_H}")
    a.sload(f"s_load_dwordx2 s[14:15], s[0:1], {KA_WS}")
    a.sload(f"s_load_dwordx2 s[8:9], s[0:1], {KA_B1}")
    a.sload(f"s_load_dwordx4 s[80:83], s[0:1], {KA_B2}")
    a("s_getreg_b32 s42, hwreg(HW_REG_XCC_ID)")
    a("s_and_b32 s21, s2, 7")
    a("s_lshr_b32 s27, s2, 3")
    a("s_lshl_b32 s44, s21, 5"); a("s_add_u32 s44, s44, s27")
    a("s_lshl_b32 s45, s44, 13")
    a("v_lshrrev_b32 v1, 6, v0")
    a("v_and_b32 v2, 63, v0")
    a("v_readfirstlane_b32 s18, v1")
    a("v_and_b32 v3, 15, v0")
    a("v_bfe_u32 v4, v0, 4, 2")
    a("v_lshlrev_b32 v5, 5, v0")
    a("v_lshlrev_b32 v6, 4, v0")
    a(f"v_mov_b32 v14, {OOB}")
    a("v_subrev_u32 v7, 4, v6")
    a("v_cmp_eq_u32 vcc, 0, v0")
    a("v_lshlrev_b32 v8, 9, v1")
    a("v_lshl_add_u32 v8, v3, 4, v8")
    a("v_cndmask_b32 v7, v7, v14, vcc")
    a("v_cndmask_b32 v13, v14, 0, vcc")
    a("v_lshl_add_u32 v8, v4, 2, v8")
    a("v_lshlrev_b32 v9, 3, v8")
    a("v_lshlrev_b32 v8, 2, v8")
    a("v_lshlrev_b32 v16, 4, v2")
    if STAMPS: a("v_mov_b32 v15, 0")
    a("s_lshl_b32 s16, s21, 1"); a("s_lshr_b32 s26, s27, 4"); a("s_add_u32 s16, s16, s26")
    a("s_and_b32 s17, s27, 15")
    a("s_lshr_b32 s19, s17, 3")
    a("s_and_b32 s20, s17, 7")
    a("s_lshr_b32 s22, s18, 1")
    a("s_and_b32 s23, s18, 1")
    a("s_and_b32 s42, s42, 15"); a("s_add_u32 s42, s42, 1")
    a("s_add_u32 s46, s45, 4096")
    a.wait_lg0()
    stamp(a, 0)
    a.srd(48, 4, 0x200000)
    ACC = 24; AS = [56, 120]; BS = [88, 152]
    EU, EQ, ES, ED, UD = 184, 192, 200, 216, 236
    U0, H0, H1, HP = 56, 64, 68, 72
    a.vmem(f"buffer_load_dwordx4 v[{H0}:{H0+3}], v6, s[48:51], s45 offen", "h0")
    a.vmem(f"buffer_load_dword v{HP}, v7, s[48:51], s45 offen", "h0p")
    a.vmem(f"buffer_load_dwordx4 v[{H1}:{H1+3}], v6, s[48:51], s46 offen", "h1")
    a.vmem(f"buffer_load_dword v{HP+1}, v7, s[48:51], s46 offen", "h1p")
    a.srd(52, 14, WS_SIZE)
    a.vmem(f"buffer_load_dwordx4 v[{U0}:{U0+3}], v5, s[52:55], s45 offen", "u0")
    a.vmem(f"buffer_load_dwordx4 v[{U0+4}:{U0+7}], v5, s[52:55], s45 offen offset:16", "u1")
    a("s_lshl_b32 s26, s44, 2"); a(f"s_add_u32 s26, s26, {WS_FLAG + FL_XT:#x}")
    a("v_mov_b32 v10, s42")
    a.vmem("buffer_store_dword v10, v13, s[52:55], s26 offen sc0 sc1", "xt")
    a.srd(64, 6, 1024)
    a(f"s_add_u32 s29, s45, {WS_QP:#x}")
    a(f"s_mov_b32 s30, {WS_QST:#x}")
    a("s_lshl_b32 s31, s44, 2")
    a("v_mov_b32 v17, 0")
    a.vmem(f"buffer_load_dword v{ED}, v17, s[64:67], s31 offen", "e")
    for pp in range(2):
        a.vmem(f"buffer_load_dwordx4 v[{EU+4*pp}:{EU+3+4*pp}], v8, s[52:55], s45 offen offset:{1024*pp}", "e")
        a.vmem(f"buffer_load_dwordx4 v[{EQ+4*pp}:{EQ+3+4*pp}], v8, s[52:55], s29 offen offset:{1024*pp}", "e")
        a.vmem(f"buffer_load_dwordx4 v[{ES+8*pp}:{ES+3+8*pp}], v9, s[52:55], s30 offen offset:{2048*pp}", "e")
        a.vmem(f"buffer_load_dwordx4 v[{ES+4+8*pp}:{ES+7+8*pp}], v9, s[52:55], s30 offen offset:{2048*pp+16}", "e")
    a.srd(84, 8, 3584)
    a.srd(56, 82, 0x200000)
    a.srd(60, 80, 1024)
    Z = 76
    for d in range(4): a(f"v_mov_b32 v{Z+d}, 0")
    a("v_lshrrev_b32 v18, 5, v0")
    a(f"v_mul_u32_u24 v18, {L_UR[1]}, v18")
    a("v_and_b32 v19, 31, v0")
    a("v_lshl_add_u32 v18, v19, 4, v18")
    a(f"v_add_u32 v18, {L_RED+4096}, v18")
    a("v_subrev_u32 v19, 64, v0")
    a("v_lshrrev_b32 v20, 1, v19")
    a("v_mul_u32_u24 v20, 4160, v20")
    a("v_and_b32 v21, 1, v19")
    a("v_lshl_add_u32 v20, v21, 4, v20")
    a(f"v_add_u32 v20, {L_RED+L_HE[0]}, v20")
    a("v_cmp_gt_u32 vcc, 64, v0")
    a("s_mul_i32 s24, s17, 114688")
    a(f"s_add_u32 s24, s24, {WS_W1P:#x}")
    a("v_cndmask_b32 v18, v20, v18, vcc")
    a("v_cmp_gt_u32 vcc, 72, v0")
    a("s_and_saveexec_b64 s[34:35], vcc")
    a.lds(f"ds_write_b128 v18, v[{Z}:{Z+3}]", "pad")
    a("s_mov_b64 exec, s[34:35]")
    a("s_lshl_b32 s25, s18, 12"); a("s_add_u32 s24, s24, s25")
    lv = [16]
    w1l = []
    for i in range(7):
        for c in range(4):
            def f(i=i, c=c):
                if c == 0: a("s_mov_b32 m0, s25"); a("s_add_u32 s25, s25, 16384")
                a.vmem(f"buffer_load_dwordx4 v{lv[0]}, s[52:55], s24 offen offset:{1024*c} lds", "w1")
                if c == 3: a("s_add_u32 s24, s24, 16384")
            w1l.append(f)
    a("v_and_b32 v10, 1, v3")
    a("v_cmp_eq_u32 vcc, 1, v10")
    a(f"v_mov_b32 v11, {L_RED+L_HO[0]+32+20}")
    a(f"v_mov_b32 v12, {L_RED+L_HE[0]+32+18}")
    a("v_cndmask_b32 v10, v11, v12, vcc")
    a("v_lshl_add_u32 v10, v3, 1, v10")
    a("v_lshlrev_b32 v11, 4, v4")
    a("v_sub_u32 v10, v10, v11")
    a("s_mul_i32 s26, s23, 8320"); a("s_lshl_b32 s29, s22, 8"); a("s_add_u32 s26, s26, s29")
    a("v_add_u32 v18, s26, v10")
    for k in range(1, 4): a(f"v_add_u32 v{18+k}, {1024*k}, v18")
    a(f"s_mul_i32 s26, s23, {L_UR[1]}"); a("s_add_u32 s26, s26, s29"); a(f"s_add_u32 s26, s26, {L_RED+528}")
    a("v_lshlrev_b32 v22, 5, v3")
    a("v_lshl_add_u32 v22, v4, 4, v22")
    a("v_sub_u32 v22, s26, v22")
    a("s_mov_b32 s78, 0x05040100"); a("s_mov_b32 s79, 0x07060302")
    a(f"v_sub_u32 v23, {L_RED+4080}, v6")
    a(f"v_add_u32 v6, {L_RED}, v6")
    def paddr(a):
        a("s_lshl_b32 s41, s16, 10"); a(f"s_add_u32 s41, s41, {WS_FLAG:#x}")
        a("s_lshl_b32 s12, s16, 2"); a("s_add_u32 s12, s12, s18")
        a("s_lshl_b32 s3, s16, 1"); a("s_add_u32 s3, s3, s19")
        a("s_lshr_b32 s26, s12, 1"); a("s_mul_i32 s10, s26, 229376"); a("s_mul_i32 s32, s17, 7168"); a("s_add_u32 s10, s10, s32")
        a("s_lshl_b32 s32, s23, 8"); a("s_add_u32 s10, s10, s32"); a(f"s_add_u32 s10, s10, {WS_H1:#x}")
        a("s_add_u32 s11, s10, 4096"); a("s_add_u32 s4, s10, 114688"); a("s_add_u32 s5, s11, 114688")
        a("s_lshl_b32 s13, s12, 4"); a("s_add_u32 s13, s13, s17"); a("s_lshl_b32 s13, s13, 7"); a(f"s_add_u32 s13, s13, {WS_RS:#x}")
        a("s_lshl_b32 s6, s3, 1"); a("s_add_u32 s6, s6, s22")
        a("s_lshl_b32 s43, s6, 2"); a("s_add_u32 s43, s43, s18"); a("s_lshl_b32 s43, s43, 9"); a("s_lshl_b32 s32, s23, 5"); a("s_add_u32 s43, s43, s32")
        a(f"s_add_u32 s43, s43, {WS_RS:#x}")
        a("s_mul_i32 s88, s3, 229376"); a("s_mul_i32 s32, s18, 28672"); a("s_add_u32 s88, s88, s32"); a(f"s_add_u32 s88, s88, {WS_H1:#x}")
        a("s_add_u32 s95, s88, 114688")
        for k in range(1, 7):
            a(f"s_add_u32 s{88+k}, s{87+k}, 4096"); a(f"s_add_u32 s{95+k}, s{94+k}, 4096")
        a("s_lshl_b32 s74, s22, 4"); a("s_add_u32 s74, s74, s17"); a("s_lshl_b32 s74, s74, 1"); a("s_add_u32 s74, s74, s23")
        a("s_lshl_b32 s74, s74, 2"); a("s_add_u32 s74, s74, s41")
        a("s_lshl_b32 s75, s19, 2"); a("s_add_u32 s75, s75, s18"); a("s_lshl_b32 s75, s75, 5"); a("s_add_u32 s75, s75, s41")
        a("s_and_b32 s68, s6, 3"); a("s_lshl_b32 s68, s68, 3"); a("s_add_u32 s68, s68, s20"); a("s_lshl_b32 s68, s68, 1"); a("s_add_u32 s68, s68, s23")
        a("s_lshl_b32 s68, s68, 2"); a("s_add_u32 s68, s68, s41")
        a("s_lshl_b32 s69, s18, 6"); a("s_add_u32 s69, s69, s41")
        a("s_lshl_b32 s7, s6, 11"); a("s_lshl_b32 s32, s23, 9"); a("s_add_u32 s7, s7, s32"); a(f"s_add_u32 s7, s7, {WS_ST:#x}")
        a(f"s_add_u32 s9, s7, {WS_ST2 - WS_ST:#x}")
        a("s_lshl_b32 s8, s12, 11"); a(f"s_add_u32 s8, s8, {WS_ST2:#x}")
        a("s_lshl_b32 s28, s6, 15"); a("s_lshl_b32 s32, s20, 11"); a("s_add_u32 s28, s28, s32"); a("s_lshl_b32 s32, s23, 7"); a("s_add_u32 s28, s28, s32")
        if WS_X3U: a(f"s_add_u32 s28, s28, {WS_X3U:#x}")
        a("s_add_u32 s33, s28, 16384")
        a("v_lshlrev_b32 v229, 2, v3")
        a("v_and_b32 v230, 7, v3"); a("v_lshlrev_b32 v230, 2, v230"); a("v_lshrrev_b32 v231, 3, v3"); a("v_lshl_add_u32 v230, v231, 1, v230")
        a("s_mul_i32 s29, s17, 224")
        a("v_lshrrev_b32 v232, 3, v2"); a("v_lshlrev_b32 v232, 14, v232"); a("v_and_b32 v233, 7, v2"); a("v_lshl_add_u32 v232, v233, 8, v232")
        a("v_lshl_add_u32 v232, v4, 28, v232")
        a("v_and_b32 v233, 3, v2"); a("v_lshlrev_b32 v233, 7, v233"); a("v_bfe_u32 v234, v2, 2, 1"); a("v_lshl_add_u32 v233, v234, 10, v233")
        a("v_bfe_u32 v234, v2, 3, 1"); a("v_lshl_add_u32 v233, v234, 18, v233"); a("v_lshl_add_u32 v233, v4, 28, v233")
    a("s_mul_i32 s76, s20, 229376"); a("s_mul_i32 s26, s18, 57344"); a("s_add_u32 s76, s76, s26")
    a(f"s_add_u32 s76, s76, {WS_W2P:#x}")
    w2l = []
    for n in range(56):
        def f(n=n):
            a.vmem(f"buffer_load_dwordx4 a[{n*4}:{n*4+3}], v{lv[0]}, s[52:55], s76 offen offset:{1024*(n&3)}", "w2")
            if (n & 3) == 3: a("s_add_u32 s76, s76, 4096")
        w2l.append(f)
    small = []
    for p in range(3): small.append(lambda p=p: a.vmem(f"buffer_load_dword v{223+p}, v229, s[84:87], s29 offen offset:{64*p}", "b1"))
    small.append(lambda: a.vmem("buffer_load_ushort v226, v230, s[84:87], s29 offen offset:192", "b1"))
    small.append(lambda: a.vmem("buffer_load_dword v228, v17, s[52:55], s13 offen", "b1"))
    small.append(lambda: a.vmem("buffer_load_dword v228, v232, s[52:55], s28 offen", "b1"))
    small.append(lambda: a.vmem("buffer_load_dword v228, v233, s[52:55], s7 offen", "b1"))
    small.append(lambda: a.vmem("buffer_load_dword v228, v16, s[52:55], s41 offen", "b1"))
    paddr(a)
    for f in w1l[:4*NW1PRE]: f()
    del w1l[:4*NW1PRE]
    for ch, (H, P) in enumerate(((H0, HP), (H1, HP+1))):
        a.wait_vm(f"h{ch}p")
        a.lds(f"ds_write_b128 v6, v[{H}:{H+3}] offset:{L_HE[ch]+32}", "he")
        O = 88 + 4*ch
        a(f"v_alignbit_b32 v{O}, v{H}, v{P}, 16")
        for d in range(1, 4): a(f"v_alignbit_b32 v{O+d}, v{H+d}, v{H+d-1}, 16")
        a.lds(f"ds_write_b128 v6, v[{O}:{O+3}] offset:{L_HO[ch]+32}", "ho")
    a.wait_vm("u1")
    R0 = 80
    for d in range(4):
        a(f"v_perm_b32 v{R0+d}, v{U0+6-2*d}, v{U0+7-2*d}, s78")
        a(f"v_perm_b32 v{R0+4+d}, v{U0+6-2*d}, v{U0+7-2*d}, s79")
    a.lds(f"ds_write_b128 v23, v[{R0}:{R0+3}] offset:{L_UR[0]}", "ur")
    a.lds(f"ds_write_b128 v23, v[{R0+4}:{R0+7}] offset:{L_UR[1]}", "ur")
    a.wait_lg0()
    a("s_barrier")
    stamp(a, 1)
    F = Fill()
    T0, T1 = 252, 253
    F.add(lambda: a.wait_vm("e"))
    F.ins(a, f"v_lshlrev_b32 v{ED+1}, 16, v{ED}"); F.ins(a, f"v_and_b32 v{ED+2}, {MASKHI}, v{ED}")
    for e in range(8):
        m, r = ES + 2*e, ES + 2*e + 1
        F.ins(a, f"v_lshlrev_b32 v{T0}, 16, v{EU+e}"); F.ins(a, f"v_and_b32 v{T1}, {MASKHI}, v{EU+e}")
        F.ins(a, f"v_mul_f32 v{UD+2*e}, v{T0}, v{ED+1}"); F.ins(a, f"v_mul_f32 v{UD+2*e+1}, v{T1}, v{ED+2}")
        if EXACT:
            F.ins(a, f"v_cvt_pk_bf16_f32 v{T0}, v{UD+2*e}, v{UD+2*e+1}")
            F.ins(a, f"v_lshlrev_b32 v{UD+2*e}, 16, v{T0}"); F.ins(a, f"v_and_b32 v{UD+2*e+1}, {MASKHI}, v{T0}")
        F.ins(a, f"v_lshlrev_b32 v{T0}, 16, v{EQ+e}"); F.ins(a, f"v_and_b32 v{T1}, {MASKHI}, v{EQ+e}")
        F.ins(a, f"v_sub_f32 v{T0}, v{T0}, v{m}"); F.ins(a, f"v_sub_f32 v{T1}, v{T1}, v{m}")
        if EXACT:
            F.ins(a, f"v_cvt_pk_bf16_f32 v{T0}, v{T0}, v{T1}")
            F.ins(a, f"v_and_b32 v{T1}, {MASKHI}, v{T0}"); F.ins(a, f"v_lshlrev_b32 v{T0}, 16, v{T0}")
        F.ins(a, f"v_mul_f32 v{m}, v{T0}, v{r}"); F.ins(a, f"v_mul_f32 v{r}, v{T1}, v{r}")
        if EXACT:
            F.ins(a, f"v_cvt_pk_bf16_f32 v{T0}, v{m}, v{r}")
            F.ins(a, f"v_lshlrev_b32 v{m}, 16, v{T0}"); F.ins(a, f"v_and_b32 v{r}, {MASKHI}, v{T0}")
    VF = w1l[:8] + small + w1l[8:] + w2l
    w1l = [];
    def load_frags(rp):
        st = rp & 1; out = []
        for n in range(8):
            A = AS[st] + 4*n; B = BS[st] + 4*n
            o = 128*(n & 1) + 16*rp
            out.append(lambda A=A, n=n, o=o: a.lds(f"ds_read2_b32 v[{A}:{A+1}], v{18+(n>>1)} offset0:{o} offset1:{o+1}", f"A{rp}_{n}"))
            out.append(lambda A=A, n=n, o=o: a.lds(f"ds_read2_b32 v[{A+2}:{A+3}], v{18+(n>>1)} offset0:{o+2} offset1:{o+3}", f"A{rp}_{n}b"))
            out.append(lambda B=B, n=n: a.lds(f"ds_read_b128 v[{B}:{B+3}], v22 offset:{512*(7-n)+64*rp}", f"B{rp}_{n}"))
        return out
    pend = load_frags(0)
    for f in pend[:12]: f()
    pend = pend[12:]
    first = [True]*8
    cnt = 0
    for rp in range(4):
        st = rp & 1
        if rp < 3: pend += load_frags(rp+1)
        pairs = sorted([(x, c) for x in range(8) for c in range(8) if x + c <= 7], key=lambda t: (max(t), t[0]+t[1]))
        for (x, c) in pairs:
            p = x + c
            mx = max(x, c)
            if rp > 0: mx = 3 if mx <= 3 else 7
            a.wait_lg([f"A{rp}_{mx}b", f"B{rp}_{mx}"])
            A = AS[st] + 4*x; B = BS[st] + 4*c; C = ACC + 4*p
            src = "0" if first[p] else f"v[{C}:{C+3}]"
            first[p] = False
            a(f"v_mfma_f32_16x16x32_bf16 v[{C}:{C+3}], v[{A}:{A+3}], v[{B}:{B+3}], {src}")
            cnt += 1
            k = len(a.lines)
            if pend: pend.pop(0)()
            if VF and cnt % CONVPACE == 2: VF.pop(0)()
            if cnt == 120:
                a("v_and_b32 v12, 31, v2"); a("v_lshlrev_b32 v12, 2, v12")
                a("s_lshl_b32 s47, s21, 7"); a(f"s_add_u32 s47, s47, {WS_FLAG + FL_XT:#x}")
                a.vmem(f"buffer_load_dword v222, v12, s[52:55], s47 offen sc1", "xtl")
            if cnt > 20: fill_gap(a, F, 2 - (len(a.lines) - k), 2)
    F.flush()
    stamp(a, 2)
    a(f"v_lshl_add_u32 v10, v1, 13, v16"); a(f"v_add_u32 v10, {L_RED}, v10")
    a(f"v_lshl_add_u32 v11, v1, 11, v16"); a(f"v_add_u32 v11, {L_RED}, v11")
    a(f"s_add_u32 s29, s45, {WS_YP:#x}")
    a(f"s_add_u32 s30, s45, {WS_X1P:#x}")
    a("s_barrier")
    a.nop(2)
    for p in range(8):
        a.lds(f"ds_write_b128 v10, v[{ACC+4*p}:{ACC+4*p+3}] offset:{1024*p}", "xw")
    QF = 120
    for e in range(8):
        unpack_lo(a, QF+2*e, EQ+e); unpack_hi(a, QF+2*e+1, EQ+e)
    a.wait_lg0()
    a("s_barrier")
    X = 56
    for pp in range(2):
        for src in range(4):
            r = X + 16*pp + 4*src
            a.lds(f"ds_read_b128 v[{r}:{r+3}], v11 offset:{8192*src+1024*pp}", f"x{pp}")
    YO, XO = 96, 104
    for pp in range(2):
        a.wait_lg(f"x{pp}")
        b = X + 16*pp
        for h in range(4): a(f"v_pk_add_f32 {pk(b+2*h)}, {pk(b+2*h)}, {pk(b+8+2*h)}")
        t = lambda i: b + 8 + 2*i
        if EXACT:
            for i in range(4): a(f"v_cvt_pk_bf16_f32 v{b+i}, v{b+i}, v{b+4+i}")
            for i in range(4): unpack_lo(a, t(i), b+i); unpack_hi(a, t(i)+1, b+i)
            for i in range(4): a(f"v_pk_add_f32 {pk(t(i))}, {pk(t(i))}, {pk(UD+2*(4*pp+i))}")
        else:
            for i in range(4):
                e = 4*pp + i
                a(f"v_add_f32 v{t(i)}, v{b+i}, v{UD+2*e}"); a(f"v_add_f32 v{t(i)+1}, v{b+4+i}, v{UD+2*e+1}")
        for i in range(4): a(f"v_cvt_pk_bf16_f32 v{YO+4*pp+i}, v{t(i)}, v{t(i)+1}")
        for i in range(4): unpack_lo(a, t(i), YO+4*pp+i); unpack_hi(a, t(i)+1, YO+4*pp+i)
        if EXACT:
            for i in range(4): a(f"v_pk_mul_f32 {pk(t(i))}, {pk(t(i))}, {pk(ES+2*(4*pp+i))}")
            for i in range(4): a(f"v_cvt_pk_bf16_f32 v{b+i}, v{t(i)}, v{t(i)+1}")
            for i in range(4): unpack_lo(a, t(i), b+i); unpack_hi(a, t(i)+1, b+i)
            for i in range(4): a(f"v_pk_add_f32 {pk(t(i))}, {pk(t(i))}, {pk(QF+2*(4*pp+i))}")
        else:
            for i in range(4): a(f"v_pk_fma_f32 {pk(t(i))}, {pk(t(i))}, {pk(ES+2*(4*pp+i))}, {pk(QF+2*(4*pp+i))}")
        for i in range(4): a(f"v_cvt_pk_bf16_f32 v{XO+4*pp+i}, v{t(i)}, v{t(i)+1}")
        a.vmem(f"buffer_store_dwordx4 v[{XO+4*pp}:{XO+4*pp+3}], v8, s[52:55], s30 offen offset:{1024*pp} sc0 sc1", "so")
        a.vmem(f"buffer_store_dwordx4 v[{YO+4*pp}:{YO+4*pp+3}], v8, s[52:55], s29 offen offset:{1024*pp} sc0 sc1", "so")
    stamp(a, 3)
    a("v_mov_b32 v5, v4"); a("v_mov_b32 v4, v3"); a("v_mov_b32 v3, v16"); lv[0] = 3
    a("v_mov_b32 v13, v12")
    a("v_add_u32 v6, 57344, v3")
    a("v_cmp_eq_u32 vcc, 0, v2")
    a(f"v_mov_b32 v9, {OOB}")
    a("v_lshrrev_b32 v10, 3, v2")
    a("v_and_b32 v11, 7, v2")
    a("v_cndmask_b32 v9, v9, 0, vcc")
    a("s_lshl_b32 s26, s6, 5"); a("s_lshl_b32 s32, s23, 4"); a("s_add_u32 s26, s26, s32")
    a("v_lshl_add_u32 v12, v10, 1, s26")
    a("v_lshlrev_b32 v0, 9, v5"); a("v_lshl_add_u32 v0, v4, 4, v0")
    a("v_lshrrev_b32 v1, 1, v5"); a("v_lshlrev_b32 v1, 9, v1"); a("v_lshl_add_u32 v1, v4, 4, v1")
    a("v_and_b32 v18, 1, v5"); a("v_lshl_add_u32 v1, v18, 3, v1")
    a.wait_vm("xtl")
    a("v_mov_b32 v14, v222")
    a("v_cmp_eq_u32 vcc, 0, v222")
    a("s_cbranch_vccz K12_XT_OK")
    poll(a, "v13", "s47", "v_cmp_eq_u32 vcc, 0, v14")
    a.label("K12_XT_OK")
    a("v_cmp_ne_u32 vcc, s42, v14")
    a("v_mov_b32 v17, 1")
    a("s_lshl_b32 s26, s21, 2"); a("s_add_u32 s26, s26, s18"); a("s_lshl_b32 s26, s26, 5"); a("s_add_u32 s26, s26, s27"); a("s_lshl_b32 s26, s26, 2")
    a(f"s_add_u32 s26, s26, {WS_FLAG + FL_LF:#x}")
    if FORCE_SLOW: a("s_branch K12_SLOW")
    a("s_cbranch_vccnz K12_SLOW")
    state = (list(a.vm), list(a.lg), list(VF))

    WR = 16
    def acc1(ft, s): return 72 + 28*s + 4*ft
    def acc2(s, c): return 192 + 32*s + 16*c
    NPRE = env('NPRE', 8)
    def hslot(n): return 128 + 4*n if n < NPRE else 16 + 4*((n - NPRE) % 12)
    AX = 64
    cold = []; events = set()
    def I_(out): return lambda s: out.append(lambda: a(s))

    def finish_stats(b, s, M, V, S, tmp):
        ln_scalars(b, [M], [V], tmp, keep_s=[S])
        b(f"v_cvt_pk_bf16_f32 v{AX+2*s}, -v{M}, -v{M}")
        b(f"v_cvt_pk_bf16_f32 v{AX+2*s+1}, -v{M}, v{S}")
        b(f"v_mul_f32 v{V}, v{V}, v{V}")
        for r in range(2): b(f"v_cndmask_b32 v{AX+2*s+r}, 0, v{AX+2*s+r}, s[34:35]")
    def fold(ft, s):
        C = acc1(ft, s)
        return MF(lambda: a(f"v_mfma_f32_16x16x16_bf16 v[{C}:{C+3}], a[{WX+2*ft}:{WX+2*ft+1}], v[{AX+2*s}:{AX+2*s+1}], v[{C}:{C+3}]"))
    def epi(s, SC, tag):
        out = []; I = I_(out)
        lo, hi = (("s10", "s11"), ("s4", "s5"))[s]
        for p in range(4):
            C = acc1(2*p, s); n = 8 if p < 3 else 4
            for i in range(n): I(f"v_mul_f32 v{C+i}, v{C+i}, abs(v{C+i})")
            if p < 3:
                for i in range(4): I(f"v_cvt_pk_bf16_f32 v{C+i}, v{C+i}, v{C+4+i}")
                for i in range(4): I(f"v_pk_max_i16 v{C+i}, v{C+i}, 0")
                so, off = (lo, 2048*p) if p < 2 else (hi, 0)
                out.append(lambda C=C, so=so, off=off: a.vmem(f"buffer_store_dwordx4 v[{C}:{C+3}], v0, s[52:55], {so} offen offset:{off} {SC}", tag))
            else:
                I(f"v_cvt_pk_bf16_f32 v{C}, v{C}, v{C+1}"); I(f"v_cvt_pk_bf16_f32 v{C+1}, v{C+2}, v{C+3}")
                for i in range(2): I(f"v_pk_max_i16 v{C+i}, v{C+i}, 0")
                out.append(lambda C=C: a.vmem(f"buffer_store_dwordx2 v[{C}:{C+1}], v1, s[52:55], {hi} offen offset:2048 {SC}", tag))
        return out
    def rs_store(s, V, SC, tag):
        return [lambda: a.vmem(f"buffer_store_dword v{V}, v8, s[52:55], s13 offen offset:{64*s} {SC}", tag)]
    def flag(sreg, off, val, tag, SCF):
        return [lambda: a(f"v_mov_b32 v7, {val}"), lambda: a.wait_vm(tag),
                lambda: (a.vmem(f"buffer_store_dword v7, v9, s[52:55], {sreg} offen offset:{off} {SCF}", "fl"), events.add((off, val)))]
    def chk_issue(sreg, off, tag):
        return lambda: a.vmem(f"buffer_load_dword v14, v13, s[52:55], {sreg} offen offset:{off} sc1", tag)
    def chk(sreg, off, tag, val):
        def f():
            assert (off, val) in events, "wait before own publish"
            a.wait_vm(tag)
            L = a.newlabel("FOK"); W = a.newlabel("FWAIT")
            a(f"v_cmp_gt_u32 vcc, {val}, v14")
            a(f"s_cbranch_vccnz {W}")
            a.label(L)
            def slow():
                a.label(W)
                poll(a, "v13", sreg, f"v_cmp_gt_u32 vcc, {val}, v14", off=off)
                a(f"s_branch {L}")
            cold.append(slow)
        return f
    def set13(mask): return [lambda: a("v_lshrrev_b32 v13, 2, v3"), lambda: a(f"v_and_b32 v13, {4*mask}, v13")]
    def hload(n):
        s, ks = divmod(n, 28); r = hslot(n)
        return lambda: a.vmem(f"buffer_load_dwordx4 v[{r}:{r+3}], v3, s[52:55], s{88 + 7*s + (ks >> 2)} offen offset:{1024*(ks&3)} sc1", f"H{n}")
    def wread(n, r, ks, ft):
        off = 1024*w1chunk(ks, ft)
        base = "v3" if off < 57344 else "v6"
        if off >= 57344: off -= 57344
        a.lds(f"ds_read_b128 v[{r}:{r+3}], {base} offset:{off}", f"W{n}")
    seq = [(ks, ft) for ks in range(16) for ft in range(7)]

    def g1_layer0(pre):
        NW = 9; AF = 128; SUM, SS, ONES = 52, 60, 68
        def wr(n): wread(n, WR + 4*(n % NW), *seq[n])
        for n in range(NW - 1): wr(n)
        F = Fill()
        for ks in range(16):
            F.ext(pre[ks])
            for ft in range(7):
                n = 7*ks + ft; r = WR + 4*(n % NW)
                for rt in range(2):
                    if rt == 0 and (n % 2 == 0 or ft == 0): a.wait_lg([f"W{min(n+1, 111)}"] + ([f"AF{ks}"] if ft == 0 else []))
                    C = acc1(ft, rt); B = AF + 8*ks + 4*rt
                    a(f"v_mfma_f32_16x16x32_bf16 v[{C}:{C+3}], v[{r}:{r+3}], v[{B}:{B+3}], {'0' if ks == 0 else f'v[{C}:{C+3}]'}")
                    free = 2
                    if rt == 0 and n + NW - 1 < 112: wr(n + NW - 1); free -= 1
                    if rt == 1 and n % 2 == 1: free -= 1
                    fill_gap(a, F, free, 2)
                if ft == 0:
                    for rt in range(2):
                        B = AF + 8*ks + 4*rt
                        for (C, A) in ((SUM + 4*rt, ONES), (SS + 4*rt, B)):
                            a(f"v_mfma_f32_16x16x32_bf16 v[{C}:{C+3}], v[{A}:{A+3}], v[{B}:{B+3}], {'0' if ks == 0 else f'v[{C}:{C+3}]'}")
                            fill_gap(a, F, 2, 2)
                    if ks == 15: F.ext([Skip(2)] + thunks(a, stats0))
                if ft == 6 and ks < 15: F.flush()
        F.flush()
    def stats0(b):
        SUM, SS = 52, 60
        for rt in range(2):
            S = SS + 4*rt; d = 68 + rt
            b(f"v_cndmask_b32 v{d}, v{S}, v{S+1}, s[36:37]")
            b(f"v_cndmask_b32 v{d}, v{d}, v{S+2}, s[38:39]")
            b(f"v_cndmask_b32 v{d}, v{d}, v{S+3}, s[30:31]")
            b(f"v_cndmask_b32 v{d}, 0, v{d}, s[24:25]")
        quad_sum(b, [68, 69], [70, 71])
        for rt in range(2):
            b(f"v_mul_f32 v{SUM+4*rt}, 0x3b000000, v{SUM+4*rt}")
            b(f"v_mul_f32 v{68+rt}, 0x3b000000, v{68+rt}")
            b(f"v_fma_f32 v{68+rt}, -v{SUM+4*rt}, v{SUM+4*rt}, v{68+rt}")
            b(f"v_max_f32 v{68+rt}, 0, v{68+rt}")
        for rt in range(2): finish_stats(b, rt, SUM+4*rt, 68+rt, SUM+4*rt+1, SUM+4*rt+2)
    def stats1_thunks(s):
        iss, ck = tagged(f"buffer_load_dwordx4 v[68:71], v4, s[52:55], s8 offen offset:{1024*s} sc1", "sd1", [f"v_or_b32 v{AX+2*s}, v69, v71", f"v_cmp_gt_i32 vcc, 0, v{AX+2*s}"])
        def f(b):
            b("v_add_f32 v68, v68, v70"); b("v_add_f32 v69, v69, v71")
            quad_sum(b, [68, 69], [70, 71])
            b("v_mul_f32 v68, 0x3b000000, v68"); b("v_mul_f32 v69, 0x3b000000, v69")
            b("v_fma_f32 v69, -v68, v68, v69"); b("v_max_f32 v69, 0, v69")
            finish_stats(b, s, 68, 69, 70, 71)
        return iss, [ck] + thunks(a, f)

    def aload1(s, ks):
        r = 128 + 64*s + 4*ks
        def f():
            if ks & 3 == 0: a(f"s_add_u32 s32, s46, {16384*s + 1024*ks}")
            a.vmem(f"buffer_load_dwordx4 v[{r}:{r+3}], v3, s[52:55], s32 offen offset:{1024*(ks&3)} sc1", f"A{s}_{ks}")
        return f
    def g1_step(s, F, VQ, prefilled, boost=0):
        NW = 12
        def wr(n): wread(n, WR + 4*(n % NW), *seq[n])
        if not prefilled:
            for n in range(NW - 1): wr(n)
        for n in range(112):
            ks, ft = seq[n]; r = WR + 4*(n % NW)
            vt = [f"A{s}_{ks}"] if ft == 0 else []
            lt = [f"W{min(n+3, 111)}"] if n % 4 == 0 else []
            if vt or lt: a.wait_both(vt, lt)
            C = acc1(ft, s); B = 128 + 64*s + 4*ks
            a(f"v_mfma_f32_16x16x32_bf16 v[{C}:{C+3}], v[{r}:{r+3}], v[{B}:{B+3}], {'0' if ks == 0 else f'v[{C}:{C+3}]'}")
            if env("FINE", 0) and n in (0, 28, 56, 84, 111): stamp(a, 19 + 5*s + (0, 28, 56, 84, 111).index(n))
            k = len(a.lines)
            m = n + NW - 1
            if m < 112: wr(m)
            elif s == 0: wread(m - 112, WR + 4*(m % NW), *seq[m - 112]) if False else None
            for f in VQ.get(n, []): f()
            free = 2 - (len(a.lines) - k) - (1 if (n + 1) % 4 == 0 or (n + 1) % 7 == 0 else 0)
            fill_gap(a, F, max(free, boost), 2)
        if os.environ.get("VERB"): print("g1_step leftover", s, len(F.q))
        F.flush()
        a.nop(2)
        for ft in range(7): fold(ft, s)()

    class HQ:
        nxt = 0
    def g2_step(s, layer, F, hq):
        def issue_next():
            n = hq.nxt
            if n >= 56: return
            if n == 28: chk("s75", 256*layer, "fcB", 2)()
            if n == 28 - G2LOOK:
                chk_issue("s75", 256*layer, "fcB")()
            hload(n)(); hq.nxt += 1
        while hq.nxt < 28*s + G2LOOK - 1: issue_next()
        for ks in range(28):
            n = 28*s + ks; r = hslot(n)
            a.wait_vm(f"H{n}")
            for c in range(2):
                C = acc2(s, c); W = (2*ks + c)*4
                a(f"v_mfma_f32_32x32x16_bf16 v[{C}:{C+15}], a[{W}:{W+3}], v[{r}:{r+3}], {'0' if ks == 0 else f'v[{C}:{C+15}]'}")
                if c == 1: issue_next()
                fill_gap(a, F, G2B0 if c == 0 else G2B1, 4)

    BLK = [72, 100]
    def dpp8(out, regs):
        I = I_(out)
        for ctl in ("quad_perm:[1,0,3,2]", "quad_perm:[2,3,0,1]", "row_half_mirror"):
            I("s_nop 0")
            for r in regs: I(f"v_add_f32_dpp v{r}, v{r}, v{r} {ctl} row_mask:0xf bank_mask:0xf")
    def s_ld(s):
        B = BLK[s]; out = []; I = I_(out)
        I(f"v_and_b32 v{B+18}, 0x70, v3"); I("s_lshl_b32 s26, s20, 7")
        out.append(lambda: a.vmem(f"buffer_load_dwordx4 v[{B+24}:{B+27}], v{B+18}, s[60:63], s26 offen", f"b2{s}"))
        return out
    def s_ldr(s):
        B = BLK[s]; out = []; I = I_(out)
        I(f"v_lshrrev_b32 v{B+19}, 7, v3"); I(f"v_lshlrev_b32 v{B+19}, 2, v{B+19}")
        out.append(lambda: a.vmem(f"buffer_load_dword v{B+16}, v{B+19}, s[52:55], s43 offen offset:{64*s} sc1", f"r2{s}"))
        return out
    def s_prep(s, layer):
        B = BLK[s]; out = []; I = I_(out)
        out.append(lambda: a.wait_vm([f"b2{s}", "own"]))
        for d in range(4):
            I(f"v_accvgpr_read_b32 v{B+20}, a{XM+2*d+s}")
            I(f"v_lshlrev_b32 v{B+21}, 16, v{B+24+d}"); I(f"v_and_b32 v{B+22}, {MASKHI}, v{B+24+d}")
            I(f"v_lshlrev_b32 v{B+d}, 16, v{B+20}"); I(f"v_and_b32 v{B+4+d}, {MASKHI}, v{B+20}")
            I(f"v_add_f32 v{B+d}, v{B+d}, v{B+21}"); I(f"v_add_f32 v{B+4+d}, v{B+4+d}, v{B+22}")
        if layer == 0:
            for d in range(4):
                I(f"v_accvgpr_read_b32 v{B+20}, a{YT+2*d+s}")
                I(f"v_lshlrev_b32 v{B+8+d}, 16, v{B+20}"); I(f"v_and_b32 v{B+12+d}, {MASKHI}, v{B+20}")
        return out
    def s_write(s):
        out = []
        for c in range(2):
            for r4 in range(4):
                C = acc2(s, c) + 4*r4
                out.append(lambda C=C, c=c, r4=r4: a.lds(f"ds_write_b128 v2, v[{C}:{C+3}] offset:{((r4>>1)*8 + 4*c + 2*(r4&1))*544}", "rw"))
        return out
    def s_read(RD):
        out = [lambda: (a.wait_lg("rw"), a("s_barrier"))]
        for src in range(4):
            for h in range(2):
                r = RD + 8*src + 4*h
                out.append(lambda r=r, src=src, h=h: a.lds(f"ds_read_b128 v[{r}:{r+3}], v10 offset:{8704*src+4352*h}", f"rr{src}"))
        return out
    def s_add(s, RD, pkm):
        B = BLK[s]; out = []; I = I_(out)
        def add(d, x, y):
            if pkm:
                for i in range(0, 8, 2): I(f"v_pk_add_f32 {pk(d+i)}, {pk(x+i)}, {pk(y+i)}")
            else:
                for i in range(8): I(f"v_add_f32 v{d+i}, v{x+i}, v{y+i}")
        out.append(lambda: a.wait_lg("rr1")); add(RD, RD, RD+8)
        out.append(lambda: a.wait_both(f"r2{s}", "rr3")); add(RD+16, RD+16, RD+24); add(RD, RD, RD+16)
        if pkm:
            for i in range(0, 8, 2): I(f"v_pk_fma_f32 {pk(B+i)}, {pk(RD+i)}, {pk(B+16)}, {pk(B+i)} op_sel_hi:[1,0,1]")
        else:
            for i in range(8): I(f"v_fmac_f32 v{B+i}, v{RD+i}, v{B+16}")
        return out
    def s_sums(X, o, pkm):
        out = []; I = I_(out)
        if pkm:
            I(f"v_pk_add_f32 {pk(o+2)}, {pk(X)}, {pk(X+2)}"); I(f"v_pk_mul_f32 {pk(o+4)}, {pk(X)}, {pk(X)}"); I(f"v_pk_fma_f32 {pk(o+4)}, {pk(X+2)}, {pk(X+2)}, {pk(o+4)}")
            for i in (4, 6): I(f"v_pk_add_f32 {pk(o+2)}, {pk(o+2)}, {pk(X+i)}"); I(f"v_pk_fma_f32 {pk(o+4)}, {pk(X+i)}, {pk(X+i)}, {pk(o+4)}")
            I(f"v_add_f32 v{o}, v{o+2}, v{o+3}"); I(f"v_add_f32 v{o+1}, v{o+4}, v{o+5}")
        else:
            I(f"v_add_f32 v{o}, v{X}, v{X+1}"); I(f"v_mul_f32 v{o+1}, v{X}, v{X}"); I(f"v_fmac_f32 v{o+1}, v{X+1}, v{X+1}")
            for i in range(2, 8): I(f"v_add_f32 v{o}, v{o}, v{X+i}"); I(f"v_fmac_f32 v{o+1}, v{X+i}, v{X+i}")
        dpp8(out, [o, o+1])
        I(f"v_and_b32 v{o+1}, 0x7fffffff, v{o+1}")
        return out
    def s_pub1(s, SC, pkm):
        B = BLK[s]
        return s_sums(B, B+18, pkm) + [lambda: a.vmem(f"buffer_store_dwordx2 {pk(B+18)}, v11, s[52:55], s7 offen offset:{1024*s} {SC}", "st")]
    def tagged(ld, tag, signreg):
        def check():
            a.wait_vm(tag)
            L = a.newlabel("SOK"); W = a.newlabel("SWAIT"); E = a.newlabel("SX")
            for l in signreg[:-1]: a(l)
            a(signreg[-1]); a(f"s_cbranch_vccnz {W}")
            a.label(L)
            def slow():
                a.label(W); a(f"s_mov_b32 s40, {SPIN_MAX}"); a.label(E)
                a(ld); a("s_waitcnt vmcnt(0)"); a("s_sub_u32 s40, s40, 1"); a(f"s_cbranch_scc1 {L}")
                for l in signreg: a(l)
                a(f"s_cbranch_vccnz {E}"); a(f"s_branch {L}")
            cold.append(slow)
        return (lambda: a.vmem(ld, tag)), check
    def s_get1(s):
        O = BLK[s] + 18
        return tagged(f"buffer_load_dwordx2 {pk(O+2)}, v5, s[52:55], s7 offen offset:{1024*s} sc1", "sd", [f"v_cmp_gt_i32 vcc, 0, v{O+3}"])
    def s_x3(s, SC):
        B = BLK[s]; O = B + 18; P = B + 24; out = []; I = I_(out)
        dpp8(out, [O+2, O+3])
        def sc(b):
            b(f"v_mul_f32 v{O+2}, 0x3b000000, v{O+2}"); b(f"v_mul_f32 v{O+3}, 0x3b000000, v{O+3}")
            b(f"v_fma_f32 v{O+3}, -v{O+2}, v{O+2}, v{O+3}"); b(f"v_max_f32 v{O+3}, 0, v{O+3}")
            ln_scalars(b, [O+2], [O+3], O+4)
            b(f"v_mul_f32 v{O+2}, -v{O+2}, v{O+3}")
        out += thunks(a, sc)
        for h in range(2):
            for i in range(4): I(f"v_fma_f32 v{P+i}, v{B+4*h+i}, v{O+3}, v{O+2}")
            for i in range(4): I(f"v_fmac_f32 v{B+4*h+i}, v{P+i}, v{B+8+4*h+i}")
        for d in range(4): I(f"v_cvt_pk_bf16_f32 v{P+d}, v{B+d}, v{B+4+d}")
        out.append(lambda: a.vmem(f"buffer_store_dwordx4 v[{P}:{P+3}], v12, s[52:55], {('s28','s33')[s]} offen {SC}", "xs"))
        return out
    def s_pub2(s, SC, pkm):
        B = BLK[s]; P = B + 24; out = []; I = I_(out)
        for d in range(4): I(f"v_lshlrev_b32 v{B+d}, 16, v{P+d}"); I(f"v_and_b32 v{B+4+d}, {MASKHI}, v{P+d}")
        out += s_sums(B, B+18, pkm)
        out.append(lambda: a.vmem(f"buffer_store_dwordx2 {pk(B+18)}, v11, s[52:55], s9 offen offset:{1024*s} {SC}", "st2"))
        for d in range(4): I(f"v_accvgpr_write_b32 a{XM+2*d+s}, v{P+d}")
        return out
    def s_final(s):
        B = BLK[s]; P = B + 24; out = []; I = I_(out)
        for d in range(4): I(f"v_cvt_pk_bf16_f32 v{P+d}, v{B+d}, v{B+4+d}")
        out.append(lambda: a.vmem(f"buffer_store_dwordx4 v[{P}:{P+3}], v12, s[56:59], s47 offen offset:{1024*s}", "out"))
        return out
    def own_loads():
        out = []; I = I_(out)
        for base, R in ((WS_X1P, XM), (WS_YP, YT)):
            for d in range(4):
                def f(base=base, R=R, d=d):
                    a(f"s_add_u32 s32, s77, {base + d*PS:#x}")
                    a.vmem(f"buffer_load_dwordx2 a[{R+2*d}:{R+2*d+1}], v14, s[52:55], s32 offen sc1", "own")
                out.append(f)
        return out
    def paced(l, n): return [x for f in l for x in (f, Skip(n))]
    def run(lst):
        for f in lst: f()

    for mode in ("FAST", "SLOW"):
        SCF = "" if mode == "FAST" else "sc0 sc1"
        SC = SCF
        if mode == "SLOW":
            a.label("K12_SLOW")
            a.vm, a.lg = list(state[0]), list(state[1])
        VF = list(state[2]); events.clear()
        run(VF[:4]); del VF[:4]
        a.wait_vm("so")
        a.vmem(f"buffer_store_dword v17, v9, s[52:55], s26 offen {SCF}", "fl")
        stamp(a, 4)
        NL = a.newlabel("NOLEAD")
        a("s_cmp_ge_u32 s27, 4"); a(f"s_cbranch_scc1 {NL}")
        a("s_cmp_lg_u32 s18, 1"); a(f"s_cbranch_scc1 {NL}")
        a("s_lshl_b32 s26, s21, 2"); a("s_add_u32 s26, s26, s27"); a("s_lshl_b32 s26, s26, 7"); a(f"s_add_u32 s26, s26, {WS_FLAG + FL_LF:#x}")
        a("v_lshlrev_b32 v18, 10, v2"); a("v_lshrrev_b32 v19, 2, v2"); a("v_lshl_add_u32 v18, v19, 26, v18")
        a("s_lshl_b32 s29, s27, 12"); a("s_lshl_b32 s30, s21, 2"); a("s_add_u32 s29, s29, s30")
        a(f"s_add_u32 s29, s29, {WS_FLAG + FL_GF:#x}")
        poll(a, "v13", "s26", "v_cmp_eq_u32 vcc, 0, v14")
        a("buffer_store_dword v17, v18, s[52:55], s29 offen sc0 sc1")
        a.label(NL)
        CP, BB = 128, 223
        a("v_lshlrev_b32 v18, 6, v4"); a("v_lshl_add_u32 v18, v5, 4, v18")
        a("s_mul_i32 s26, s17, 7168"); a(f"s_add_u32 s26, s26, {WS_C1P:#x}"); a("s_add_u32 s29, s26, 4096")
        for ft in range(7):
            a.vmem(f"buffer_load_dwordx4 v[{CP+4*ft}:{CP+4*ft+3}], v18, s[52:55], {'s26' if ft < 4 else 's29'} offen offset:{1024*(ft&3)}", "cp")
        nkeep = max(0, 56 - W2HAND)
        hand, late = (VF[:len(VF)-nkeep], VF[len(VF)-nkeep:])
        run(hand[:8])
        a.wait_vm("cp")
        G = Fill(); G.ext(hand[8:])
        def wx(b):
            for ft in range(7): b(f"v_pk_add_f32 {pk(CP+4*ft)}, {pk(CP+4*ft)}, {pk(CP+4*ft+2)}")
            for ft in range(7): b(f"v_add_f32 v{CP+4*ft}, v{CP+4*ft}, v{CP+4*ft+1}")
            quad_sum(b, [CP+4*ft for ft in range(7)], [CP+4*ft+1 for ft in range(7)])
            for ft in range(7):
                r = CP + 4*ft
                b(f"v_cvt_pk_bf16_f32 v{r+1}, v{r}, v{r}"); b(f"v_and_b32 v{r+2}, {MASKHI}, v{r+1}"); b(f"v_sub_f32 v{r}, v{r}, v{r+2}")
                b(f"v_cvt_pk_bf16_f32 v{r+1}, v{r+2}, v{r}")
                b(f"v_and_b32 v{r+2}, {MASKHI}, v{r+1}"); b(f"v_sub_f32 v{r}, v{r}, v{r+2}")
                if ft < 6 and ft & 1: b(f"v_and_b32 v{r+3}, {MASKHI}, v{BB+(ft>>1)}")
                else: b(f"v_lshlrev_b32 v{r+3}, 16, v{BB+(ft>>1)}")
                b(f"v_cvt_pk_bf16_f32 v{r+2}, v{r}, v{r+3}")
                b(f"v_accvgpr_write_b32 a{WX+2*ft}, v{r+1}"); b(f"v_accvgpr_write_b32 a{WX+2*ft+1}, v{r+2}")
            for d in range(4): b(f"v_mov_b32 v{68+d}, 0x3f803f80")
            b("v_lshlrev_b32 v7, 13, v10"); b("v_lshl_add_u32 v7, v11, 4, v7")
            b("s_lshl_b32 s26, s12, 7")
            b("v_add_u32 v7, s26, v7")
            b("s_mul_i32 s44, s18, 12288"); b(f"s_add_u32 s44, s44, {L_RED}")
            b("v_lshlrev_b32 v8, 9, v5"); b("v_lshl_add_u32 v8, v4, 3, v8"); b("v_add_u32 v8, s44, v8")
            b("v_and_b32 v13, 7, v2"); b("v_lshlrev_b32 v13, 2, v13")
            b("s_lshl_b32 s46, s12, 15")
            if WS_X3U: b(f"s_add_u32 s46, s46, {WS_X3U:#x}")
        for i, t in enumerate(thunks(a, wx)):
            t()
            if i % 12 == 11: G.emit(1)
        G.flush()
        a("v_lshrrev_b32 v18, 2, v4"); a("v_cmp_eq_u32 s[24:25], v18, v5"); a("v_and_b32 v18, 3, v4")
        a("v_cmp_eq_u32 s[36:37], 1, v18"); a("v_cmp_eq_u32 s[38:39], 2, v18"); a("v_cmp_eq_u32 s[30:31], 3, v18"); a("v_cmp_eq_u32 s[34:35], 0, v5")
        a("v_lshlrev_b32 v19, 15, v11"); a("v_lshl_add_u32 v19, v12, 2, v19"); a(f"s_mul_i32 s77, s20, {32*PS}")
        a("v_lshlrev_b32 v20, 2, v4"); a("v_lshl_add_u32 v20, v5, 28, v20")
        a("v_accvgpr_write_b32 a254, v20")
        a("v_lshlrev_b32 v20, 10, v12"); a("v_lshl_add_u32 v20, v11, 4, v20"); a("v_accvgpr_write_b32 a255, v20")
        a("s_lshl_b32 s47, s20, 7")
        a("v_lshlrev_b32 v4, 6, v4"); a("v_lshl_add_u32 v4, v5, 4, v4")
        a("v_lshlrev_b32 v5, 3, v2")
        a("s_mul_i32 s26, s18, 8704"); a(f"s_add_u32 s26, s26, {L_RED}"); a("v_and_b32 v2, 32, v2"); a("v_add3_u32 v2, v2, v3, s26")
        a("v_lshlrev_b32 v12, 8, v11"); a("v_lshl_add_u32 v12, v10, 4, v12")
        a("v_mul_u32_u24 v18, 544, v11"); a("v_lshl_add_u32 v18, v10, 4, v18")
        a("v_lshlrev_b32 v20, 6, v10"); a("v_lshl_add_u32 v11, v11, 28, v20"); a("s_lshl_b32 s26, s20, 3"); a("v_add_u32 v11, s26, v11")
        a("s_lshl_b32 s26, s18, 7"); a(f"s_add_u32 s26, s26, {L_RED}"); a("v_add_u32 v10, s26, v18")
        NP = a.newlabel("NOPOLL")
        a("s_cmp_lg_u32 s18, 0"); a(f"s_cbranch_scc1 {NP}")
        poll(a, "v13", "s41", "v_cmp_eq_u32 vcc, 0, v14", off=FL_GF)
        a.label(NP)
        a("v_mov_b32 v14, v19")
        a.wait_vm("w1")
        a("s_barrier")
        stamp(a, 5)
        def a0_dma(s):
            def l(h):
                def f():
                    if h == 0:
                        a(f"s_add_u32 m0, s44, {2048*(s % 6)}"); a(f"s_mov_b32 s26, {WS_X1P + 16*s*PS:#x}")
                    else:
                        a(f"s_add_u32 m0, s44, {2048*(s % 6) + 1024}"); a(f"s_mov_b32 s26, {WS_X1P + (16*s+8)*PS:#x}")
                    a.vmem(f"buffer_load_dwordx4 v7, s[52:55], s26 offen sc1 lds", f"A{s}")
                return f
            return [l(0), l(1)]
        def a0_read(s):
            Fr = 128 + 8*s; out = [lambda: a.wait_vm(f"A{s}")]
            base = ("v8", "v13")[(s % 6) // 3]
            out.append(lambda: a(f"v_add_u32 v13, {2048*(s % 6)}, v8"))
            for rt in range(2):
                for e in range(2):
                    out.append(lambda rt=rt, e=e: a.lds(f"ds_read2_b32 {pk(Fr+4*rt+2*e)}, v13 offset0:{64*e+rt} offset1:{64*e+32+rt}", f"AF{s}"))
            return out
        for s in range(A0LOOK): run(a0_dma(s))
        pre = [[] for _ in range(16)]
        ol = own_loads() + late
        for s in range(16):
            if s + 1 < 16: pre[s] += [Skip(2)] + a0_read(s + 1)
            if s + A0LOOK < 16:
                d = a0_dma(s + A0LOOK); pre[s] += [d[0], Skip(3), d[1]]
            elif s < 15:
                k = (len(ol) + 14 - s) // (15 - s)
                for f in ol[:k]: pre[s] += [f, Skip(2)]
                ol = ol[k:]
        pre[15] += [lambda: a("v_accvgpr_read_b32 v8, a254")] + set13(7)
        run(a0_read(0))
        SCH0 = "sc0 sc1"
        g1_layer0(pre)
        stamp(a, 6)
        a.nop(2)
        for s in range(2):
            for ft in range(7): fold(ft, s)()
        run(rs_store(0, 68, SCH0, "hs0"))
        run(epi(0, SCH0, "hs0"))
        run(rs_store(1, 69, SCH0, "hs1"))
        stamp(a, 7)
        e1 = epi(1, SCH0, "hs1")
        run(e1)
        run(flag("s74", 0, 1, "hs0", SCF))
        run(flag("s74", 0, 2, "hs1", SCF))
        poll(a, "v13", "s75", "v_cmp_gt_u32 vcc, 1, v14"); a.vm = []
        stamp(a, 8)
        RD0, RD1 = 160, 16
        GA, GB = env("SGAP", 3), env("SGAP2", 2*G2LOOK)
        hq = HQ(); hq.nxt = 0
        run(s_ld(0) + s_ld(1) + s_ldr(0))
        F = Fill(); F.ext([Skip(4)] + s_prep(0, 0) + s_prep(1, 0))
        g2_step(0, 0, F, hq); F.flush()
        stamp(a, 9)
        iss0, ck0 = s_get1(0)
        F = Fill(); F.ext(s_ldr(1) + [Skip(2)] + s_write(0) + [Skip(GA)] + s_read(RD0) + [Skip(GA)] + s_add(0, RD0, False) + s_pub1(0, SC, False)
                          + [Skip(env("SGAP1", 4)), iss0, lambda: a("s_barrier"), Skip(GB), ck0] + s_x3(0, SC) + s_pub2(0, SC, False)[:20] + flag("s68", 512, 1, "xs", SCF))
        g2_step(1, 0, F, hq)
        stamp(a, 10)
        rest0 = list(F.q)
        assert ck0 not in rest0[10:] and iss0 not in rest0
        if os.environ.get("VERB"): print("rest0", len(rest0))
        k_ = len(a.lines); run(rest0[:10]); a.nop(max(0, 11 - (len(a.lines) - k_)))
        run(s_write(1)); run(rest0[10:])
        run(set13(15))
        run(s_read(RD1))
        chk_issue("s69", 512, "fx0")()
        run(s_pub2(0, SC, False)[20:])
        run(s_add(1, RD1, True)); run(s_pub1(1, SC, True))
        stamp(a, 11)
        chk("s69", 512, "fx0", 1)()
        stamp(a, 12)
        iss1, ck1 = s_get1(1)
        for ks in range(2): aload1(0, ks)()
        iss1()
        for ks in range(2, G1LOOK): aload1(0, ks)()
        VQ = {}
        for ks in range(G1LOOK, 16): VQ.setdefault(APACE*(ks - G1LOOK) + 1, []).append(aload1(0, ks))
        sti0, str0 = stats1_thunks(0)
        F = Fill(); F.ext([Skip(8), ck1] + s_x3(1, SC) + s_pub2(1, SC, False) + flag("s68", 512, 2, "xs", SCF) + [sti0, Skip(10), chk_issue("s69", 512, "fx1"), Skip(10)]
                          + str0 + rs_store(0, 69, SC, "hs0") + [chk("s69", 512, "fx1", 2)] + paced([aload1(1, ks) for ks in range(G1LOOK)], 3))
        g1_step(0, F, VQ, False, env("BOOST0", 2))
        stamp(a, 13)
        VQ = {}
        for ks in range(G1LOOK, 16): VQ.setdefault(APACE*(ks - G1LOOK) + 1, []).append(aload1(1, ks))
        sti1, str1 = stats1_thunks(1)
        F = Fill(); F.ext(epi(0, SC, "hs0") + [sti1] + set13(7) + [lambda: a("v_accvgpr_read_b32 v12, a255"), Skip(14)] + flag("s74", 256, 1, "hs0", SCF) + str1[:12]
                          + [chk_issue("s75", 256, "fcA")] + str1[12:] + rs_store(1, 69, SC, "hs1") + [chk("s75", 256, "fcA", 1)] + paced([hload(n) for n in range(NPRE)], 3))
        g1_step(1, F, VQ, False, env('BOOST1', 2))
        stamp(a, 14)
        hq = HQ(); hq.nxt = NPRE
        F = Fill(); F.ext(s_ld(0) + s_ldr(0) + epi(1, SC, "hs1") + s_ld(1) + [Skip(8)] + s_prep(0, 1) + flag("s74", 256, 2, "hs1", SCF) + [Skip(6)] + s_prep(1, 1))
        g2_step(0, 1, F, hq); F.flush()
        stamp(a, 15)
        F = Fill(); F.ext(s_ldr(1) + [Skip(2)] + s_write(0) + [Skip(GA)] + s_read(RD0) + [Skip(GA)] + s_add(0, RD0, False) + s_final(0) + [Skip(4), lambda: a("s_barrier")])
        g2_step(1, 1, F, hq); F.flush()
        stamp(a, 16)
        a.nop(10)
        run(s_write(1)); run(s_read(RD1)); run(s_add(1, RD1, True)); run(s_final(1))
        stamp(a, 17)
        if STAMPS: a("v_lshrrev_b32 v2, 4, v3")
        stamp_flush(a, 2, 18, 15, 2, 13, "s18")
        a("s_endpgm")
        for f in cold: f()
        cold[:] = []
        if mode == "FAST": a.label("K12_FAST_END")
    a.label("K12_END")
    a("s_endpgm")
    return a.text()
```
